```python
import torch

def _softmax(x, axis=-1):
    return torch.softmax(x, dim=axis)
def _gelu(x):
    return torch.nn.functional.gelu(x, approximate="tanh")
def _silu(x):
    return torch.nn.functional.silu(x)
def _sigmoid(x):
    return torch.sigmoid(x)
def _layernorm(x, axis=-1, eps=1e-5):
    m = x.mean(dim=axis, keepdim=True)
    v = x.var(dim=axis, keepdim=True, unbiased=False)
    return (x - m) / torch.sqrt(v + eps)
def _scatter_add(tgt, idx, src, axis=0):
    return tgt.clone().index_add_(axis, idx, src)
def _segment_sum(src, seg, n):
    out = torch.zeros((n,) + src.shape[1:], dtype=src.dtype)
    return out.index_add_(0, seg, src)
def _pad(x, pw):
    flat = tuple(v for pair in reversed(pw) for v in pair)
    return torch.nn.functional.pad(x, flat)

kernel_name = 'recurrent_scan__linear_kernel_hedgehog__mixer_s_mlp__prompt'

def setup_inputs():

    _w = (lambda a: (lambda t: t.to(torch.bfloat16) if t.is_floating_point() else t)(torch.as_tensor(a)))
    def _A_setup():
        B, S, D, H = 1, 2048, 448, 16
        Dh = D // H
        return {
            "x": _w((lambda *s: torch.randn(*s, dtype=torch.bfloat16) * 0.05)(B, S, D)),
            "wqkv": _w((lambda *s: torch.randn(*s, dtype=torch.bfloat16) * 0.2)(D, 3 * D)),
            "w_phi": _w((lambda *s: torch.randn(*s, dtype=torch.bfloat16) * 0.2)(H, Dh, Dh) * (Dh ** -0.5)),
            "wo": _w((lambda *s: torch.randn(*s, dtype=torch.bfloat16) * 0.05)(D, D)),
        }
    _A_in = _A_setup()

    def _B_setup():
        B, S, D, F = 1, 2048, 448, 1792
        return {
            "x":  _w((lambda *s: torch.randn(*s, dtype=torch.bfloat16) * 0.05)(B, S, D)),
            "w1": _w((lambda *s: torch.randn(*s, dtype=torch.bfloat16) * 0.8)(D, D) * (D ** -0.5)),
            "w2": _w((lambda *s: torch.randn(*s, dtype=torch.bfloat16) * 0.8)(D, D) * (D ** -0.5)),
            "w3": _w((lambda *s: torch.randn(*s, dtype=torch.bfloat16) * 0.8)(D, F) * (D ** -0.5)),
            "w4": _w((lambda *s: torch.randn(*s, dtype=torch.bfloat16) * 0.8)(F, D) * (F ** -0.5)),
        }
    _B_in = _B_setup()

    return {
        "A_x": _A_in["x"],
        "A_wqkv": _A_in["wqkv"],
        "A_w_phi": _A_in["w_phi"],
        "A_wo": _A_in["wo"],
        "B_x": _B_in["x"],
        "B_w1": _B_in["w1"],
        "B_w2": _B_in["w2"],
        "B_w3": _B_in["w3"],
        "B_w4": _B_in["w4"],
    }

def reference(A_x, A_wqkv, A_w_phi, A_wo, B_x, B_w1, B_w2, B_w3, B_w4):
    def _A_ref(x, wqkv, w_phi, wo):
        B, S, D = x.shape
        H = 16; Dh = D // H
        qkv = (lambda x, *d: x.permute(*d))((x @ wqkv).reshape(B, S, 3, H, Dh), 2, 0, 3, 1, 4)
        q, k, v = qkv[0], qkv[1], qkv[2]
        pq = torch.einsum("bhsd,hdf->bhsf", q, w_phi)
        pk = torch.einsum("bhsd,hdf->bhsf", k, w_phi)
        phi_q = torch.concatenate([_softmax(pq, axis=-1), _softmax(-pq, axis=-1)], axis=-1)
        phi_k = torch.concatenate([_softmax(pk, axis=-1), _softmax(-pk, axis=-1)], axis=-1)
        kv = torch.einsum("bhsf,bhsd->bhfd", phi_k, v)
        z  = torch.einsum("bhsf->bhf", phi_k)
        num = torch.einsum("bhqf,bhfd->bhqd", phi_q, kv)
        den = torch.einsum("bhqf,bhf->bhq", phi_q, z)[..., None] + 1e-6
        o = num / den
        return (lambda x, *d: x.permute(*d))(o, 0, 2, 1, 3).reshape(B, S, D) @ wo

    def _B_ref(x, w1, w2, w3, w4):
        B, S, D = x.shape
        h = _gelu(_layernorm(x, axis=-1) @ w1)
        c = D // 4
        g0 = _pad(h[:, :, 0*c:1*c], ((0, 0), (1, 0), (0, 0)))[:, :S, :]
        g1 = _pad(h[:, :, 1*c:2*c], ((0, 0), (0, 1), (0, 0)))[:, 1:, :]
        g2 = _pad(h[:, :, 2*c:3*c], ((0, 0), (2, 0), (0, 0)))[:, :S, :]
        g3 = _pad(h[:, :, 3*c:   ], ((0, 0), (0, 2), (0, 0)))[:, 2:, :]
        hs = torch.concatenate([g0, g1, g2, g3], axis=-1) @ w2
        x1 = x + hs
        h2 = _gelu(_layernorm(x1, axis=-1) @ w3) @ w4
        return x1 + h2

    x = A_x
    xn = _layernorm(x, axis=-1)
    s = _A_ref(xn, A_wqkv, A_w_phi, A_wo)
    g = _silu(_B_ref(xn, B_w1, B_w2, B_w3, B_w4))
    return x + s * g
```

```python
import re

TRANS = ("v_exp_f32", "v_log_f32", "v_rcp_f32", "v_rsq_f32", "v_sqrt_f32", "v_sin_f32", "v_cos_f32")
REG_RE = re.compile(r"^(-)?(?:abs\()?\|?([vas])(?:(\d+)|\[(\d+):(\d+)\])\|?\)?$")

def parse_reg(tok):
    tok = tok.strip()
    if tok in ("vcc",): return [("s", 106), ("s", 107)]
    if tok == "vcc_lo": return [("s", 106)]
    if tok == "vcc_hi": return [("s", 107)]
    if tok == "exec": return [("s", 126), ("s", 127)]
    if tok == "exec_lo": return [("s", 126)]
    if tok == "exec_hi": return [("s", 127)]
    if tok == "m0": return [("s", 124)]
    m = REG_RE.match(tok)
    if not m: return []
    k = m.group(2)
    if m.group(3) is not None: return [(k, int(m.group(3)))]
    return [(k, i) for i in range(int(m.group(4)), int(m.group(5)) + 1)]

def split_ops(rest):
    ops, depth, cur = [], 0, ""
    for ch in rest:
        if ch in "[(": depth += 1
        if ch in "])": depth -= 1
        if ch == "," and depth == 0:
            ops.append(cur.strip()); cur = ""
        else: cur += ch
    if cur.strip(): ops.append(cur.strip())
    mods = ""
    if ops:
        parts = ops[-1].split(None, 1)
        ops[-1] = parts[0]
        mods = parts[1] if len(parts) > 1 else ""
    return ops, mods

class Ins:
    __slots__ = ("op", "kind", "wr", "rd", "rdA", "rdC", "states", "text", "passes", "wide", "mods")

def classify(text):
    t = text.split(";")[0].strip()
    parts = t.split(None, 1)
    op = parts[0]; rest = parts[1] if len(parts) > 1 else ""
    ops, mods = split_ops(rest)
    i = Ins(); i.op = op; i.text = text; i.states = 1; i.wr = set(); i.rd = set(); i.rdA = set(); i.rdC = []
    i.passes = 0; i.wide = False; i.mods = mods
    R = [parse_reg(o) for o in ops]
    base = re.sub(r"_(e32|e64|dpp|sdwa)$", "", op)
    if op == "s_nop":
        i.kind = "nop"; i.states = int(ops[0], 0) + 1
    elif op.startswith("v_mfma"):
        i.kind = "mfma"; i.passes = 8 if "32x32" in op else 4
        i.wr = set(R[0]); i.rdA = set(R[1]) | set(R[2]); i.rdC = R[3]; i.rd = i.rdA | set(R[3])
    elif op.startswith("v_"):
        i.kind = "valu"
        if base in TRANS: i.kind = "trans"
        if base.startswith("v_dot"): i.kind = "dot"
        i.wr = set(R[0])
        for r in R[1:]: i.rd |= set(r)
        if base.startswith("v_permlane") and "swap" in base:
            i.wr |= set(R[1]); i.rd |= set(R[0])
        if base in ("v_fmac_f32", "v_dot2c_f32_bf16", "v_pk_fmac_f16"): i.rd |= set(R[0])
        if base.startswith("v_add_co") or base.startswith("v_sub_co") or base.startswith("v_addc_co"):
            i.wr |= set(R[1])
        if base == "v_cndmask_b32" and len(ops) == 3: i.rd |= {("s", 106), ("s", 107)}
        if base == "v_dot2_f32_bf16": i.rdC = R[3]
        if base == "v_dot2c_f32_bf16": i.rdC = R[0]
    elif op.startswith("ds_"):
        i.kind = "ds"
        if op.startswith("ds_read") or op.startswith("ds_bpermute") or op.startswith("ds_swizzle"):
            i.wr = set(R[0])
            for r in R[1:]: i.rd |= set(r)
        else:
            for r in R: i.rd |= set(r)
    elif op.startswith("buffer_") or op.startswith("global_"):
        i.kind = "vmem"
        lds = re.search(r"\blds\b", mods) is not None
        if "load" in op and not lds:
            i.wr = set(R[0])
            for r in R[1:]: i.rd |= set(r)
        else:
            for r in R: i.rd |= set(r)
            if lds: i.rd |= {("s", 124)}; i.kind = "vmem"; i.rdA = {("s", 124)}
            if "store" in op and ("x4" in op or "x3" in op):
                i.wide = True; i.rdC = R[0] if op.startswith("buffer_") else R[1]
            if "atomic" in op and re.search(r"\bsc0\b", mods): i.wr = set(R[0])
    elif op.startswith("s_"):
        i.kind = "salu"
        if op.startswith("s_cmp") or op.startswith("s_bitcmp") or op.startswith("s_cbranch") or op in ("s_branch", "s_waitcnt", "s_barrier", "s_endpgm", "s_setprio", "s_sleep"):
            for r in R: i.rd |= set(r)
        else:
            if R: i.wr = set(R[0])
            for r in R[1:]: i.rd |= set(r)
    else:
        raise ValueError("unknown instr " + text)
    return i

VALU_KINDS = ("valu", "trans", "dot")

def need(p, c):
    n = 0
    pv = {r for r in p.wr if r[0] != "s"}
    ps = {r for r in p.wr if r[0] == "s"}
    cbase = re.sub(r"_(e32|e64|dpp|sdwa)$", "", c.op)
    if p.kind in VALU_KINDS:
        if c.kind == "mfma" and pv & c.rd: n = max(n, 2)
        if p.kind == "trans" and c.kind in ("valu", "dot") and pv & c.rd: n = max(n, 1)
        if ps:
            if c.kind == "vmem" and ps & c.rd: n = max(n, 5)
            if c.kind in VALU_KINDS and ps & c.rd: n = max(n, 2)
            if c.kind == "salu" and ps & c.rd: n = max(n, 1)
        if cbase in ("v_readfirstlane_b32", "v_readlane_b32") and pv & c.rd: n = max(n, 1)
        if (cbase.startswith("v_permlane") or c.op.endswith("_dpp")) and pv & c.rd: n = max(n, 2)
        if p.kind == "dot" and (pv & (c.rd | c.wr)) and c.kind != "nop":
            if c.op == p.op and not (pv & (c.rd - set(c.rdC))) : pass
            else: n = max(n, 3)
        if p.op.endswith("_sdwa") and c.kind in VALU_KINDS and pv & (c.rd | c.wr): n = max(n, 1)
    if p.kind == "mfma":
        big = 12 if p.passes == 8 else 8
        ovl = 10 if p.passes == 8 else 6
        war = 7 if p.passes == 8 else 3
        if c.kind == "mfma":
            if pv & c.rdA: n = max(n, big)
            if pv & set(c.rdC):
                if set(c.rdC) == pv and c.passes == p.passes: pass
                else: n = max(n, ovl)
            elif pv & c.wr: n = max(n, big)
        elif c.kind in VALU_KINDS or c.kind in ("ds", "vmem"):
            if pv & (c.rd | c.wr): n = max(n, big)
            if c.kind in VALU_KINDS and set(p.rdC) & c.wr: n = max(n, war)
    if p.kind == "vmem" and p.wide and set(p.rdC) & c.wr:
        n = max(n, 2 if c.kind in VALU_KINDS or c.kind == "mfma" else 1)
    if p.kind == "salu" and ("s", 124) in p.wr and c.kind == "vmem" and ("s", 124) in c.rdA: n = max(n, 1)
    return n

class Asm:
    def __init__(self):
        self.out = []; self.hist = []
        self.vm = []; self.vm_done = 0
        self.lg = []; self.lg_done = 0
        self.nops = 0; self.count = 0
    def raw(self, s): self.out.append(s)
    def label(self, name):
        self.out.append(name + ":")
    def comment(self, s): self.out.append("; " + s)
    def I(self, text, tag=None):
        c = classify(text)
        dist = 0; pad = 0
        for p in reversed(self.hist):
            nd = need(p, c)
            if nd > dist: pad = max(pad, nd - dist)
            dist += p.states
            if dist >= 12: break
        while pad > 0:
            k = min(pad, 16)
            self._push(classify(f"s_nop {k-1}")); self.nops += 1; pad -= k
        self._push(c)
        if c.kind == "vmem": self.vm.append(tag)
        if c.kind == "ds": self.lg.append(tag)
        if c.op == "s_waitcnt":
            m = re.search(r"vmcnt\((\d+)\)", text)
            if m: self.vm_done = max(self.vm_done, len(self.vm) - int(m.group(1)))
            m = re.search(r"lgkmcnt\((\d+)\)", text)
            if m: self.lg_done = max(self.lg_done, len(self.lg) - int(m.group(1)))
        return c
    def _push(self, c):
        self.out.append("    " + c.text); self.hist.append(c); self.count += 1
        if len(self.hist) > 24: self.hist.pop(0)
    def _last(self, lst, tag):
        for i in range(len(lst) - 1, -1, -1):
            if lst[i] == tag: return i
        raise KeyError(tag)
    def wait(self, vm=None, lg=None):
        parts = []
        if vm is not None:
            idx = max(self._last(self.vm, t) for t in (vm if isinstance(vm, (list, tuple)) and not isinstance(vm, str) and isinstance(vm, list) else [vm]))
            if idx >= self.vm_done:
                parts.append(f"vmcnt({min(63, len(self.vm) - 1 - idx)})")
        if lg is not None:
            idx = max(self._last(self.lg, t) for t in (lg if isinstance(lg, list) else [lg]))
            if idx >= self.lg_done:
                parts.append(f"lgkmcnt({min(15, len(self.lg) - 1 - idx)})")
        if parts: self.I("s_waitcnt " + " ".join(parts))
    def flush(self, n=12):
        self.I(f"s_nop {n-1}")
    def text(self): return "\n".join(self.out) + "\n"
```

```python
import sys, struct, math
from asmlib import Asm

NAME = "recurrent_scan__linear_kernel_hedgehog__mixer_s_mlp__prompt"
def f2u(x): return struct.unpack("<I", struct.pack("<f", x))[0]
def hx(x): return "0x%08x" % (x & 0xffffffff)

WS_EPOCH = 0x0
WS_FLAG  = 0x1000
WS_PROF  = 0x80000
WS_HS    = 0x100000
WS_X1    = 0x300000
WS_ST    = 0x4C0000
WS_CS    = 0x500000
WS_KVP   = 0x600000
WS_KVF   = 0xA00000
WS_O     = 0xB00000
WS_H3    = 0xE00000
WS_SIZE  = 0x1500000
OOB      = 0x7fffff00
NSLOT = 35
L_PK  = NSLOT * 4096
L_R2  = L_PK + 4 * 4608
LDS_BYTES = 163840
POLL_MAX = 200000

class RA:
    def __init__(self, kind, n, start=0):
        self.kind = kind; self.used = [False] * n
        for i in range(start): self.used[i] = True
        self.hi = start
    def alloc(self, n=1, align=1):
        if n >= 2: align = max(align, 2)
        for b in range(0, len(self.used) - n + 1, align):
            if not any(self.used[b:b + n]):
                for i in range(b, b + n): self.used[i] = True
                self.hi = max(self.hi, b + n)
                return b
        raise RuntimeError("out of regs " + self.kind)
    def free(self, b, n=1):
        for i in range(b, b + n):
            assert self.used[i]; self.used[i] = False

def vr(b, n=1): return f"v{b}" if n == 1 else f"v[{b}:{b+n-1}]"
def ar(b, n=1): return f"a{b}" if n == 1 else f"a[{b}:{b+n-1}]"
def sr(b, n=1): return f"s{b}" if n == 1 else f"s[{b}:{b+n-1}]"

sWG, sM, sN, sWAVE, sTH, sW2 = 2, 3, 4, 5, 6, 7
RX, RQKV, RPHI, RWO, RW1, RW2, RW3, RW4, ROUT, RDBG, RWS = [sr(32 + 4 * i, 4) for i in range(11)]
sQUART, sOFF = 76, 77
sW1B, sW1S, sKB, sW2B, sW3B, sW4B = 78, 79, 80, 81, 82, 83
sJ, sP, sTOK, sCNT, sFLAG = 84, 85, 86, 87, 88
sO64 = 89
sUP = 90
sL28 = 92
sL2E = 94
sT0, sT1, sT2, sT3 = 8, 9, 10, 11
sPROF = 12

class Gen:
    def __init__(self, prof=False, stop_after=None):
        self.a = Asm(); self.I = self.a.I
        self.V = RA("v", 256, 1); self.A = RA("a", 256)
        self.prof = prof; self.nstamp = 0
        self.slots = [dict(free=True, done=None, priv=False) for _ in range(NSLOT)]
        self.queue = []; self.qi = 0; self.nidx = 0
        self.synced_vm = 0
        self.win = {}
        self.npoll = 0
        self.stop_after = stop_after

    def stamp(self):
        if not self.prof: return
        I = self.I
        I("s_memtime s[96:97]"); I("s_waitcnt lgkmcnt(0)")
        I(f"s_mov_b32 s{sPROF + self.nstamp}, s96"); self.nstamp += 1
        assert self.nstamp <= 20
    def srd(self, R, ptr, nbytes):
        b = int(R[2:].split(":")[0]); I = self.I
        I(f"s_mov_b32 s{b}, s{ptr}"); I(f"s_mov_b32 s{b+1}, s{ptr+1}")
        I(f"s_mov_b32 s{b+2}, {nbytes}"); I(f"s_mov_b32 s{b+3}, 0x20000")
    def add_pieces(self, tag, n, srd, voff, sbase, step, first=0, priv=False, sstride=None):
        addrs = []
        for i in range(n):
            slot = self.nidx % NSLOT; self.nidx += 1
            self.queue.append(dict(tag=tag(i) if callable(tag) else tag, srd=srd, voff=voff, sbase=sbase,
                                   imm=(first + i) * step, slot=slot, priv=priv, sstride=sstride))
            addrs.append(slot * 4096)
        return addrs
    def reserve(self, n):
        addrs = []
        for i in range(n):
            slot = self.nidx % NSLOT; self.nidx += 1
            assert self.slots[slot]["free"]
            self.slots[slot] = dict(free=False, done=None, priv=False); addrs.append(slot * 4096)
        return addrs
    def can_issue(self):
        if self.qi >= len(self.queue): return False
        st = self.slots[self.queue[self.qi]["slot"]]
        if st["free"]: return True
        return st["priv"] and st["done"] is not None and self.a.lg_done >= st["done"]
    def pump(self, n=1):
        I = self.I
        while n > 0 and self.can_issue():
            p = self.queue[self.qi]; self.qi += 1; n -= 1
            I(f"s_add_u32 m0, s{sQUART}, {p['slot']*4096}")
            if p["sstride"] is not None:
                I("s_nop 0")
                I(f"buffer_load_dwordx4 {p['voff']}, {p['srd']}, s{p['sbase']} offen lds", p["tag"])
                I(f"s_add_u32 s{p['sbase']}, s{p['sbase']}, s{p['sstride']}")
            else:
                I(f"s_add_u32 s{sOFF}, s{p['sbase']}, {p['imm']}")
                I(f"buffer_load_dwordx4 {p['voff']}, {p['srd']}, s{sOFF} offen lds", p["tag"])
            self.slots[p["slot"]] = dict(free=False, done=None, priv=p["priv"])
    def release(self, addrs):
        for ad in addrs: self.slots[ad // 4096]["done"] = len(self.a.lg)
    def bar(self):
        self.I("s_barrier"); self.nbar = getattr(self, "nbar", 0) + 1
        self.synced_vm = self.a.vm_done
        for st in self.slots:
            if not st["free"] and st["done"] is not None and self.a.lg_done >= st["done"]: st["free"] = True
    def issued(self, tag):
        return not any(p["tag"] == tag for p in self.queue[self.qi:])
    def need(self, tag, priv=False):
        while not self.issued(tag):
            assert self.can_issue(), f"cannot issue pieces for {tag}"
            self.pump()
        idx = self.a._last(self.a.vm, tag)
        if priv:
            self.a.wait(vm=tag); return
        if idx < self.synced_vm: return
        self.a.wait(vm=tag); self.bar()
    def laddr(self, pat, off):
        w = off >> 16
        if w == 0: return vr(pat), off
        if (pat, w) not in self.win:
            r = self.V.alloc(); self.win[(pat, w)] = r
            self.I(f"v_add_u32 v{r}, {w << 16}, v{pat}")
        return vr(self.win[(pat, w)]), off & 0xffff
    def drop_pat(self, pat, free=True):
        for k in [k for k in self.win if k[0] == pat]:
            self.V.free(self.win.pop(k))
        if free: self.V.free(pat)
    def tr(self, dst, pat, off, tag):
        v, o = self.laddr(pat, off)
        self.I(f"ds_read_b64_tr_b16 {dst}, {v} offset:{o}", tag)
    def afrag(self, base, pat, off0, off1, tag, pat1=None):
        self.tr(ar(base, 2), pat, off0, tag); self.tr(ar(base + 2, 2), pat if pat1 is None else pat1, off1, tag)
    def mfma(self, d, x, y, first):
        c = "0" if first else vr(d, 16)
        self.I(f"v_mfma_f32_32x32x16_bf16 {vr(d,16)}, {x}, {y}, {c}")
    def flag_store(self, stage):
        I = self.I
        I(f"s_add_u32 s{sOFF}, s{sFLAG}, {stage * 0x8000}")
        I("s_mov_b64 exec, 1")
        I(f"buffer_store_dword v{self.vTOK}, v{self.vFOFF}, {RWS}, s{sOFF} offen sc1", "flag")
        I("s_mov_b64 exec, -1")
    def publish(self, stage, tag):
        self.a.wait(vm=tag); self.bar(); self.flag_store(stage)
    def poll(self, vaddr):
        I = self.I; k = self.npoll; self.npoll += 1
        t = self.V.alloc()
        I(f"s_mov_b32 s{sCNT}, {POLL_MAX}")
        self.a.label(f"L_poll{k}")
        I(f"buffer_load_dword v{t}, v{vaddr}, {RWS}, 0 offen sc1", "poll")
        I(f"s_sub_u32 s{sCNT}, s{sCNT}, 1")
        I(f"s_cbranch_scc1 L_abort")
        I("s_waitcnt vmcnt(0)")
        I(f"v_cmp_eq_u32 vcc, v{t}, v{self.vTOK}")
        I("s_cmp_eq_u64 vcc, -1")
        I(f"s_cbranch_scc0 L_poll{k}")
        self.V.free(t)

    def gelu_tile(self, acc, K0, K1, out, cs=None, pump_every=2):
        I = self.I; V = self.V
        T = [V.alloc(2) for _ in range(2)]
        for p0 in range(0, 8, 2):
            prs = [p0, p0 + 1]
            U = [acc + 2 * p for p in prs]
            if cs is not None:
                for k, p in enumerate(prs):
                    I(f"v_pk_fma_f32 {vr(U[k],2)}, {vr(cs+2*p,2)}, {vr(K1,2)}, {vr(U[k],2)} op_sel:[0,1,0] op_sel_hi:[1,1,1]")
            for k in range(2): I(f"v_pk_mul_f32 {vr(T[k],2)}, {vr(U[k],2)}, {vr(U[k],2)}")
            for k in range(2): I(f"v_pk_fma_f32 {vr(T[k],2)}, {vr(T[k],2)}, {vr(K0,2)}, {vr(K0,2)} op_sel:[0,1,0] op_sel_hi:[1,1,0]")
            for k in range(2): I(f"v_pk_mul_f32 {vr(T[k],2)}, {vr(T[k],2)}, {vr(U[k],2)}")
            for k in range(2):
                I(f"v_exp_f32 v{T[k]}, v{T[k]}"); I(f"v_exp_f32 v{T[k]+1}, v{T[k]+1}")
            for k in range(2): I(f"v_pk_fma_f32 {vr(T[k],2)}, {vr(T[k],2)}, {vr(K1,2)}, {vr(K1,2)} op_sel_hi:[1,0,0]")
            for k in range(2):
                I(f"v_rcp_f32 v{T[k]}, v{T[k]}"); I(f"v_rcp_f32 v{T[k]+1}, v{T[k]+1}")
            for k in range(2): I(f"v_pk_mul_f32 {vr(T[k],2)}, {vr(T[k],2)}, {vr(U[k],2)}")
            for k, p in enumerate(prs): I(f"v_cvt_pk_bf16_f32 v{out+p}, v{T[k]}, v{T[k]+1}")
            self.pump(pump_every)
        for t in T: V.free(t, 2)

    def gelu_consts(self, r, K0, K1):
        I = self.I
        c0 = -2.0 * math.sqrt(2.0 / math.pi) * math.log2(math.e); c1 = c0 * 0.044715
        I(f"v_rcp_f32 v{K1}, v{r}")
        I(f"v_mul_f32 v{K0}, {hx(f2u(c0))}, v{r}")
        I(f"v_mul_f32 v{K0+1}, v{r}, v{r}")
        I(f"v_mul_f32 v{K0+1}, v{K0+1}, v{r}")
        I(f"v_mul_f32 v{K0+1}, {hx(f2u(c1))}, v{K0+1}")

    def feature_map(self, acc, out):
        I = self.I; V = self.V
        pk = V.alloc(8, 4)
        for p in range(8): I(f"v_cvt_pk_bf16_f32 v{pk+p}, v{acc+2*p}, v{acc+2*p+1}")
        I(f"v_and_b32 v{pk+6}, v{pk+6}, v{self.vMLO}"); I(f"v_and_b32 v{pk+7}, v{pk+7}, v{self.vMLO}")
        self.mfma(acc, ar(self.aPHI, 4), vr(pk, 4), True)
        self.mfma(acc, ar(self.aPHI + 4, 4), vr(pk + 4, 4), False)
        V.free(pk, 8)
        self.pump(2)
        mm = V.alloc(2); mx, mn = mm, mm + 1
        I(f"v_max3_f32 v{mx}, v{acc}, v{acc+1}, v{acc+2}")
        I(f"v_max3_f32 v{mn}, -v{acc}, -v{acc+1}, -v{acc+2}")
        for k in range(3, 15, 2):
            I(f"v_max3_f32 v{mx}, v{mx}, v{acc+k}, v{acc+k+1}")
            I(f"v_max3_f32 v{mn}, v{mn}, -v{acc+k}, -v{acc+k+1}")
        I(f"v_max_f32 v{mx}, v{mx}, v{acc+15}")
        I(f"v_max_f32_e64 v{mn}, v{mn}, -v{acc+15}")
        I(f"v_permlane32_swap_b32 v{mx}, v{mn}")
        I(f"v_max_f32 v{mx}, v{mx}, v{mn}")
        I(f"v_mul_f32 v{mx}, {hx(f2u(-math.log2(math.e)))}, v{mx}")
        I(f"v_mov_b32 v{mn}, v{mx}")
        I(f"v_permlane32_swap_b32 v{mx}, v{mn}")
        neg = V.alloc(16, 2)
        for p in range(8):
            I(f"v_pk_fma_f32 {vr(neg+2*p,2)}, {vr(acc+2*p,2)}, {sr(sL2E,2)}, {vr(mm,2)} op_sel:[0,0,1] op_sel_hi:[1,0,1] neg_lo:[1,0,0] neg_hi:[1,0,0]")
            I(f"v_pk_fma_f32 {vr(acc+2*p,2)}, {vr(acc+2*p,2)}, {sr(sL2E,2)}, {vr(mm,2)} op_sel_hi:[1,0,0]")
        for k in range(16):
            I(f"v_exp_f32 v{acc+k}, v{acc+k}"); I(f"v_exp_f32 v{neg+k}, v{neg+k}")
            if k % 4 == 3: self.pump(1)
        S = [V.alloc(2), V.alloc(2)]; H = [V.alloc(2), V.alloc(2)]
        for s, b in enumerate((acc, neg)): I(f"v_pk_add_f32 {vr(S[s],2)}, {vr(b,2)}, {vr(b+2,2)}")
        for s, b in enumerate((acc, neg)): I(f"v_pk_add_f32 {vr(H[s],2)}, {vr(b+12,2)}, {vr(b+14,2)}")
        for k in range(4, 12, 2):
            for s, b in enumerate((acc, neg)): I(f"v_pk_add_f32 {vr(S[s],2)}, {vr(S[s],2)}, {vr(b+k,2)}")
        for s in range(2): I(f"v_pk_fma_f32 {vr(S[s],2)}, {vr(H[s],2)}, {vr(self.vFM,2)}, {vr(S[s],2)} op_sel_hi:[1,0,1]")
        for s in range(2): I(f"v_add_f32 v{S[s]}, v{S[s]}, v{S[s]+1}")
        I(f"v_permlane32_swap_b32 v{S[0]}, v{S[1]}")
        I(f"v_add_f32 v{S[0]}, v{S[0]}, v{S[1]}")
        I(f"v_rcp_f32 v{S[0]}, v{S[0]}")
        I(f"v_mov_b32 v{S[1]}, v{S[0]}")
        I(f"v_permlane32_swap_b32 v{S[0]}, v{S[1]}")
        for s in range(2): I(f"v_mul_f32 v{S[s]+1}, v{S[s]}, v{self.vFM}")
        for s, b in enumerate((acc, neg)):
            for p in range(8):
                sel = "op_sel:[0,1] op_sel_hi:[1,1]" if p >= 6 else "op_sel_hi:[1,0]"
                I(f"v_pk_mul_f32 {vr(b+2*p,2)}, {vr(b+2*p,2)}, {vr(S[s],2)} {sel}")
            self.pump(1)
        for s, b in enumerate((acc, neg)):
            for p in range(8): I(f"v_cvt_pk_bf16_f32 v{out+8*s+p}, v{b+2*p}, v{b+2*p+1}")
        for x in S + H: V.free(x, 2)
        V.free(neg, 16); V.free(mm, 2)

    def loop1(self, name, units, pat, acc, swap=False, bfrag=None, pre=None, hooks=None, D=3):
        ring = self.aRING; hooks = hooks or {}
        def rd(s):
            u = s // 14
            if s % 14 == 0: self.need(f"{name}{u}")
            base = units[u] + (s % 14) * 2048
            if pre: pre(s)
            self.afrag(ring + 4 * (s % (D + 1)), pat, base, base + 1024, (name, s))
        for s in range(D): rd(s)
        for s in range(28):
            if s + D < 28: rd(s + D)
            self.a.wait(lg=(name, s))
            A = ar(ring + 4 * (s % (D + 1)), 4); B = bfrag(s) if bfrag else ar(self.aX + 4 * s, 4)
            if swap: self.mfma(acc, B, A, s == 0)
            else: self.mfma(acc, A, B, s == 0)
            if s % 2 == 1: self.pump(1)
            if s in hooks: hooks[s]()

    def build(self):
        a = self.a; I = self.I; V = self.V; A = self.A
        a.raw(f"; @launch grid=(256,1,1) block=(256,1,1) lds={LDS_BYTES}")
        a.raw('.amdgcn_target "amdgcn-amd-amdhsa--gfx950"')
        a.raw(".text"); a.raw(f".globl {NAME}_kernel"); a.raw(".p2align 8"); a.raw(f".type {NAME}_kernel,@function")
        a.label(f"{NAME}_kernel")
        I("s_cmp_ge_u32 s2, 256"); I("s_cbranch_scc1 L_end")
        I("s_load_dwordx8 s[8:15], s[0:1], 0")
        I("s_load_dwordx8 s[16:23], s[0:1], 40")
        I("s_load_dwordx4 s[24:27], s[0:1], 72")
        I("s_load_dwordx2 s[28:29], s[0:1], 88")
        if self.prof: I("s_memrealtime s[98:99]")
        vL = V.alloc(); t0 = V.alloc(); t1 = V.alloc(); t2 = V.alloc(); t3 = V.alloc()
        I(f"v_lshrrev_b32 v{t0}, 6, v0"); I(f"v_and_b32 v{vL}, 63, v0")
        I(f"v_readfirstlane_b32 s{sWAVE}, v{t0}")
        I(f"s_and_b32 s{sM}, s2, 7"); I(f"s_lshl_b32 s{sM}, s{sM}, 2"); I(f"s_lshr_b32 s{sN}, s2, 6"); I(f"s_add_u32 s{sM}, s{sM}, s{sN}")
        I(f"s_lshr_b32 s{sN}, s2, 3"); I(f"s_and_b32 s{sN}, s{sN}, 7")
        I(f"s_and_b32 s{sTH}, s{sWAVE}, 1"); I(f"s_lshr_b32 s{sW2}, s{sWAVE}, 1")
        I(f"s_lshl_b32 s{sQUART}, s{sWAVE}, 10")
        vXO = V.alloc()
        I(f"v_lshrrev_b32 v{t0}, 2, v{vL}"); I(f"v_mul_u32_u24 v{vXO}, 896, v{t0}")
        I(f"v_and_b32 v{t1}, 3, v{vL}"); I(f"v_lshl_add_u32 v{vXO}, v{t1}, 4, v{vXO}")
        I(f"s_lshl_b32 s30, s{sM}, 2"); I(f"s_add_u32 s30, s30, s{sWAVE}"); I(f"s_mul_i32 s30, s30, {16*896}")
        self.vZ = vZ = V.alloc(); I(f"v_mov_b32 v{vZ}, 0")
        I("s_waitcnt lgkmcnt(0)")
        self.srd(RX, 8, 2048 * 896); self.srd(RWS, 28, WS_SIZE)
        vEP = V.alloc(2)
        I(f"buffer_load_dword v{vEP}, v{vZ}, {RWS}, 0 offen sc1", "epoch")
        vX = V.alloc(56, 4)
        for i in range(14):
            I(f"buffer_load_dwordx4 {vr(vX+4*i,4)}, v{vXO}, {RX}, s30 offen offset:{64*i}", ("x", i))
        V.free(vXO)
        self.srd(RQKV, 10, 448 * 2688); self.srd(RPHI, 12, 25088); self.srd(RWO, 14, 448 * 896)
        self.srd(RW2, 18, 448 * 896); self.srd(RW3, 20, 448 * 3584); self.srd(RW4, 22, 1792 * 896)
        self.srd(ROUT, 24, 2048 * 896); self.srd(RDBG, 26, 256)
        I(f"s_cmp_eq_u32 s{sN}, 7")
        I("s_cselect_b32 s48, s20, s16"); I("s_cselect_b32 s49, s21, s17")
        I(f"s_mov_b32 s50, {448*896}"); I(f"s_cselect_b32 s50, {448*3584}, s50"); I("s_mov_b32 s51, 0x20000")
        I(f"s_cselect_b32 s{sT0}, s{sM}, s{sN}")
        I(f"s_mov_b32 s{sT1}, 896"); I(f"s_cselect_b32 s{sT1}, 3584, s{sT1}")
        I(f"s_lshl_b32 s{sW1S}, s{sT1}, 5")
        I(f"s_mul_i32 s{sW1B}, s{sT1}, s{sWAVE}"); I(f"s_lshl_b32 s{sW1B}, s{sW1B}, 3")
        I(f"s_lshl_b32 s{sT0}, s{sT0}, 7"); I(f"s_add_u32 s{sW1B}, s{sW1B}, s{sT0}")
        vD1 = V.alloc(); vD896 = V.alloc(); vDQ = V.alloc(); vD3 = V.alloc(); vL16 = V.alloc()
        self.vL16 = vL16
        I(f"v_lshlrev_b32 v{vL16}, 4, v{vL}")
        I(f"v_lshrrev_b32 v{t0}, 3, v{vL}")
        I(f"v_lshrrev_b32 v{t1}, 2, v{vL}"); I(f"v_and_b32 v{t1}, 4, v{t1}")
        I(f"v_and_b32 v{t2}, 7, v{vL}"); I(f"v_xor_b32 v{t2}, v{t2}, v{t1}")
        I(f"v_lshlrev_b32 v{t3}, 4, v{t2}")
        I(f"v_mad_u32_u24 v{vD1}, v{t0}, s{sT1}, v{t3}")
        self.reserve_xn = XN = self.reserve(14)
        W1 = self.add_pieces(lambda i: f"w1{i//7}", 14, RW1, vr(vD1), sW1B, 0, sstride=sW1S)
        self.pump(14)
        I(f"v_mul_u32_u24 v{vD896}, 896, v{t0}"); I(f"v_add_u32 v{vD896}, v{vD896}, v{t3}")
        I(f"s_mul_i32 s{sT0}, s{sN}, 112"); I(f"s_and_b32 s{sO64}, s{sT0}, 63"); I(f"s_sub_u32 s{sT0}, s{sT0}, s{sO64}")
        I(f"s_mul_i32 s{sKB}, s{sWAVE}, {8*2688}"); I(f"s_add_u32 s{sKB}, s{sKB}, s{sT0}")
        I(f"v_add_u32 v{t1}, 128, v{t3}")
        I(f"v_cmp_gt_u32 vcc, s{sO64}, v{t3}")
        I(f"v_cndmask_b32 v{t1}, v{t3}, v{t1}, vcc")
        I(f"v_mul_u32_u24 v{vDQ}, 2688, v{t0}"); I(f"v_add_u32 v{vDQ}, v{vDQ}, v{t1}")
        def panel(name, srd, voff, sbase, step, extra):
            ad = self.add_pieces(lambda i: f"{name}{i//7}", 14, srd, voff, sbase, step)
            for p in self.queue[-14:]: p["imm"] += extra
            return ad
        WK = panel("wk", RQKV, vr(vDQ), sKB, 32 * 2688, 896)
        WV = panel("wv", RQKV, vr(vDQ), sKB, 32 * 2688, 1792)
        I(f"s_lshl_b32 s{sT0}, s{sN}, 7")
        I(f"s_mul_i32 s{sW2B}, s{sWAVE}, {8*896}"); I(f"s_add_u32 s{sW2B}, s{sW2B}, s{sT0}")
        I(f"s_mul_i32 s{sW4B}, s{sWAVE}, {448*896}"); I(f"s_add_u32 s{sW4B}, s{sW4B}, s{sT0}")
        W2 = panel("w2", RW2, vr(vD896), sW2B, 32 * 896, 0)
        WQ = panel("wq", RQKV, vr(vDQ), sKB, 32 * 2688, 0)
        I(f"s_add_u32 m0, s{sQUART}, {L_PK}")
        I(f"s_mul_i32 s{sT0}, s{sN}, 3136"); I(f"s_add_u32 s{sT0}, s{sT0}, s{sQUART}")
        I(f"buffer_load_dwordx4 v{vL16}, {RPHI}, s{sT0} offen lds", "phi")
        self.pump(7)
        I(f"s_lshr_b32 s{sP}, s{sM}, 1"); I(f"s_and_b32 s{sJ}, s{sM}, 1"); I(f"s_mul_i32 s{sJ}, s{sJ}, 7"); I(f"s_add_u32 s{sJ}, s{sJ}, s{sN}")
        I(f"s_lshl_b32 s{sT0}, s{sJ}, 8"); I(f"s_mul_i32 s{sW3B}, s{sWAVE}, {4*3584}"); I(f"s_add_u32 s{sW3B}, s{sW3B}, s{sT0}")
        I(f"v_lshrrev_b32 v{t0}, 4, v{vL}"); I(f"v_lshlrev_b32 v{t1}, 2, v{t0}")
        I(f"v_and_b32 v{t2}, 15, v{vL}"); I(f"v_xor_b32 v{t2}, v{t2}, v{t1}"); I(f"v_lshlrev_b32 v{t2}, 4, v{t2}")
        I(f"v_mul_u32_u24 v{vD3}, 3584, v{t0}"); I(f"v_add_u32 v{vD3}, v{vD3}, v{t2}")
        W3 = self.add_pieces(lambda i: f"w3{i//7}", 28, RW3, vr(vD3), sW3B, 16 * 3584)
        W4 = self.add_pieces(lambda i: ("w4", i), 56, RW4, vr(vD896), sW4B, 8 * 896, priv=True)
        WO = panel("wo", RWO, vr(vD896), sW2B, 32 * 896, 0)
        self.vTOK = V.alloc(); self.vFOFF = V.alloc(); self.vFM = V.alloc(2); self.vMLO = V.alloc()
        I(f"s_mov_b32 s{sUP}, 0"); I(f"s_mov_b32 s{sUP+1}, -1")
        I(f"s_mov_b32 s{sL28}, 0x10000000"); I(f"s_mov_b32 s{sL28+1}, 0x10000000")
        I(f"s_mov_b32 s{sL2E}, {hx(f2u(math.log2(math.e)))}"); I(f"s_mov_b32 s{sL2E+1}, s{sL2E}")
        I(f"v_cndmask_b32 v{self.vFM}, 1.0, 0, {sr(sUP,2)}"); I(f"v_cndmask_b32 v{self.vMLO}, -1, 0, {sr(sUP,2)}")
        I(f"v_mov_b32 v{self.vFM+1}, 0")
        I(f"s_cmp_eq_u32 s{sWAVE}, 0"); I(f"s_cselect_b32 s{sT0}, 0, {hx(OOB)}"); I(f"v_mov_b32 v{self.vFOFF}, s{sT0}")
        I(f"s_lshl_b32 s{sFLAG}, s{sM}, 3"); I(f"s_add_u32 s{sFLAG}, s{sFLAG}, s{sN}"); I(f"s_lshl_b32 s{sFLAG}, s{sFLAG}, 7"); I(f"s_add_u32 s{sFLAG}, s{sFLAG}, {WS_FLAG}")
        vPW = V.alloc(); vPW2 = V.alloc(); vPQ = V.alloc(); vRC = V.alloc(); vROW = V.alloc()
        I(f"v_bfe_u32 v{t0}, v{vL}, 2, 2")
        I(f"v_lshrrev_b32 v{t1}, 5, v{vL}"); I(f"v_lshl_add_u32 v{vROW}, v{t1}, 2, v{t0}")
        I(f"v_and_b32 v{t2}, 3, v{vL}"); I(f"v_lshlrev_b32 v{t2}, 3, v{t2}")
        I(f"v_bfe_u32 v{t3}, v{vL}, 4, 1"); I(f"v_lshl_add_u32 v{vRC}, v{t3}, 5, v{t2}")
        I(f"v_lshrrev_b32 v{t0}, 1, v{t0}"); I(f"v_lshlrev_b32 v{t0}, 6, v{t0}")
        I(f"s_lshl_b32 s{sT0}, s{sW2}, 6")
        I(f"v_add_u32 v{t1}, s{sT0}, v{vRC}"); I(f"v_xor_b32 v{t1}, v{t1}, v{t0}"); I(f"v_lshl_add_u32 v{vPW}, v{vROW}, 7, v{t1}")
        I(f"v_xor_b32 v{vPW2}, 64, v{vPW}")
        I(f"s_mul_i32 s{sT0}, s{sW2}, 56"); I(f"s_add_u32 s{sT0}, s{sT0}, s{sO64}")
        I(f"v_add_u32 v{t1}, s{sT0}, v{vRC}"); I(f"v_and_b32 v{t1}, 127, v{t1}"); I(f"v_xor_b32 v{t1}, v{t1}, v{t0}"); I(f"v_lshl_add_u32 v{vPQ}, v{vROW}, 7, v{t1}")
        self.stamp()
        st = V.alloc(4, 2)
        for k in range(4): I(f"v_mov_b32 v{st+k}, 0")
        vONE = V.alloc(4, 4)
        for k in range(4): I(f"v_mov_b32 v{vONE+k}, 0x3f803f80")
        for i in range(14):
            a.wait(vm=("x", i))
            if i == 0:
                I(f"s_mov_b32 s{sT1}, 1664525")
                I(f"v_mul_lo_u32 v{vEP}, v{vEP}, s{sT1}"); I(f"v_add_u32 v{vEP}, 1013904223, v{vEP}"); I(f"v_mov_b32 v{vEP+1}, 1")
                I(f"s_or_b32 s{sT0}, s2, s{sWAVE}"); I(f"s_cmp_eq_u32 s{sT0}, 0"); I(f"s_cselect_b32 s{sT0}, 0, {hx(OOB)}")
                I(f"v_mov_b32 v{t0}, s{sT0}")
                I("s_mov_b64 exec, 1")
                I(f"buffer_store_dwordx2 {vr(vEP,2)}, v{t0}, {RDBG}, 0 offen sc1", "tokst")
                I(f"buffer_store_dword v{vEP}, v{t0}, {RWS}, 0 offen sc1", "tokst")
                I("s_mov_b64 exec, -1")
            for k in range(4):
                d = vX + 4 * i + k; o = 2 * (k & 1)
                I(f"v_dot2c_f32_bf16 v{st+o}, v{d}, v{vONE}")
                I(f"v_dot2c_f32_bf16 v{st+o+1}, v{d}, v{d}")
        I(f"v_pk_add_f32 {vr(st,2)}, {vr(st,2)}, {vr(st+2,2)}")
        for qp in ("[1,0,3,2]", "[2,3,0,1]"):
            for k in range(2): I(f"v_add_f32_dpp v{st+k}, v{st+k}, v{st+k} quad_perm:{qp} row_mask:0xf bank_mask:0xf")
        I(f"v_mul_f32 v{st}, {hx(f2u(1/448))}, v{st}")
        I(f"v_mul_f32 v{st+1}, {hx(f2u(1/448))}, v{st+1}")
        I(f"v_fma_f32 v{st+1}, -v{st}, v{st}, v{st+1}")
        I(f"v_max_f32 v{st+1}, 0, v{st+1}")
        I(f"v_add_f32 v{st+2}, {hx(f2u(1e-5))}, v{st+1}")
        I(f"v_rsq_f32 v{st+2}, v{st+2}")
        I(f"v_mul_f32_e64 v{st+3}, -v{st}, v{st+2}")
        I(f"v_mul_f32 v{st+1}, v{st+1}, v{st+2}"); I(f"v_mul_f32 v{st+1}, v{st+1}, v{st+2}")
        I(f"v_add_f32 v{st+1}, {hx(f2u(1e-5))}, v{st+1}")
        I(f"v_rsq_f32 v{st+1}, v{st+1}")
        I(f"v_and_b32 v{t0}, 60, v{vL}"); I(f"s_lshl_b32 s{sT0}, s{sWAVE}, 6"); I(f"s_add_u32 s{sT0}, s{sT0}, {L_R2}")
        I(f"v_add_u32 v{t0}, s{sT0}, v{t0}")
        I(f"ds_write_b32 v{t0}, v{st+1}", "r2w")
        I(f"v_lshrrev_b32 v{t0}, 2, v{vL}"); I(f"s_lshl_b32 s{sT0}, s{sTH}, 4"); I(f"v_add_u32 v{t0}, s{sT0}, v{t0}")
        I(f"v_bfe_u32 v{t1}, v{vL}, 1, 1")
        I(f"v_lshlrev_b32 v{t2}, 2, v{t1}"); I(f"v_xor_b32 v{t0}, v{t0}, v{t2}"); I(f"v_lshlrev_b32 v{t0}, 4, v{t0}")
        I(f"v_lshl_add_u32 v{t0}, v{t1}, 10, v{t0}")
        I(f"v_and_b32 v{t1}, 1, v{vL}"); I(f"v_lshl_add_u32 v{t0}, v{t1}, 3, v{t0}")
        assert XN[0] == 0 and XN[7] == 28672
        I(f"s_mul_i32 s{sT0}, s{sW2}, 28672"); I(f"v_add_u32 v{t0}, s{sT0}, v{t0}")
        tp = [V.alloc(2), V.alloc(2)]
        for i in range(14):
            for k0 in (0, 2):
                for k in range(2):
                    d = vX + 4 * i + k0 + k
                    I(f"v_lshlrev_b32 v{tp[k]}, 16, v{d}"); I(f"v_and_b32 v{tp[k]+1}, 0xffff0000, v{d}")
                for k in range(2):
                    I(f"v_pk_fma_f32 {vr(tp[k],2)}, {vr(tp[k],2)}, {vr(st+2,2)}, {vr(st+2,2)} op_sel:[0,0,1] op_sel_hi:[1,0,1]")
                for k in range(2):
                    I(f"v_cvt_pk_bf16_f32 v{vX+4*i+k0+k}, v{tp[k]}, v{tp[k]+1}")
            I(f"ds_write2st64_b64 v{t0}, {vr(vX+4*i,2)}, {vr(vX+4*i+2,2)} offset0:{4*i} offset1:{4*i+1}", "xnw")
        for x in tp: V.free(x, 2)
        V.free(st, 4)
        vTK2 = V.alloc(2)
        I(f"buffer_load_dwordx2 {vr(vTK2,2)}, v{vZ}, {RDBG}, 0 offen sc1", "tok")
        vBE = V.alloc(); vBO = V.alloc()
        I(f"s_mul_i32 s{sT0}, s{sTH}, 28672"); I(f"v_add_u32 v{vBE}, s{sT0}, v{vL16}"); I(f"v_xor_b32 v{vBO}, 64, v{vBE}")
        a.wait(lg="xnw", vm=["w10", "phi"]); self.bar()
        V.free(vX, 56); V.free(vEP, 2)
        self.stamp()
        self.aRING = A.alloc(32, 4); self.aPHI = A.alloc(8, 4); self.aX = aX = A.alloc(112, 4)
        vRES = V.alloc(8, 4); vR2 = V.alloc()
        I(f"s_lshl_b32 s{sT0}, s{sN}, 1"); I(f"s_add_u32 s{sT0}, s{sT0}, s{sW2}"); I(f"s_lshl_b32 s{sT0}, s{sT0}, 11")
        I(f"s_min_u32 s{sT0}, s{sT0}, {26*1024}")
        I(f"v_add_u32 v{t0}, s{sT0}, v{vBE}"); I(f"v_add_u32 v{t1}, s{sT0}, v{vBO}")
        I(f"ds_read_b128 {vr(vRES,4)}, v{t0}", "res"); I(f"ds_read_b128 {vr(vRES+4,4)}, v{t1} offset:1024", "res")
        I(f"v_and_b32 v{t2}, 31, v{vL}"); I(f"s_lshl_b32 s{sT0}, s{sTH}, 7"); I(f"s_add_u32 s{sT0}, s{sT0}, {L_R2}")
        I(f"v_lshl_add_u32 v{t2}, v{t2}, 2, s{sT0}")
        I(f"ds_read_b32 v{vR2}, v{t2}", "res")
        I(f"v_min_u32 v{t0}, 48, v{vRC}")
        I(f"s_mul_i32 s{sT0}, s{sW2}, 1568"); I(f"s_add_u32 s{sT0}, s{sT0}, {L_PK}")
        I(f"v_add_u32 v{t0}, s{sT0}, v{t0}")
        I(f"v_and_b32 v{t1}, 3, v{vROW}"); I(f"v_mul_u32_u24 v{t1}, 56, v{t1}"); I(f"v_add_u32 v{t1}, v{t1}, v{t0}")
        I(f"v_mul_u32_u24 v{t2}, 56, v{vROW}"); I(f"v_add_u32 v{t0}, v{t2}, v{t0}")
        self.afrag(self.aPHI, t0, 0, 8 * 56, "res"); self.afrag(self.aPHI + 4, t0, 16 * 56, 24 * 56, "res", pat1=t1)
        acc = V.alloc(16, 4)
        def xpre(s):
            I(f"ds_read_b128 {ar(aX+4*s,4)}, v{vBO if s & 1 else vBE} offset:{s*1024}", ("w1", s))
        I(f"s_cmp_eq_u32 s{sN}, 7"); I("s_cbranch_scc1 L_s1_spare")
        snap = self.snapshot()
        self.loop1("w1", [W1[0], W1[7]], vPW, acc, pre=xpre)
        self.release(XN + W1); a.wait(lg=("w1", 27)); self.bar()
        K0 = V.alloc(2); K1 = V.alloc(2); outp = V.alloc(8, 4); vSA = V.alloc(2);
        self.gelu_consts(vR2, K0, K1)
        self.pump(2)
        for u in range(2):
            I(f"s_lshl_b32 s{sT0}, s{sN}, 1"); I(f"s_add_u32 s{sT0}, s{sT0}, s{sW2}"); I(f"s_lshl_b32 s{sT0}, s{sT0}, 1"); I(f"s_add_u32 s{sT0}, s{sT0}, {u}")
            I(f"s_mul_i32 s{sT1}, s{sT0}, 37"); I(f"s_lshr_b32 s{sT1}, s{sT1}, 8")
            I(f"s_lshr_b32 s{sT2}, s{sT1}, 1"); I(f"s_add_u32 s{sT2}, s{sT2}, 1")
            I(f"s_sub_u32 s{sT3}, 0, s{sT2}"); I(f"s_bitcmp1_b32 s{sT1}, 0"); I(f"s_cselect_b32 s{sT2}, s{sT3}, s{sT2}")
            I(f"s_lshl_b32 s{sT1}, s{sM}, 1"); I(f"s_add_u32 s{sT1}, s{sT1}, s{sTH}"); I(f"s_lshl_b32 s{sT1}, s{sT1}, 5"); I(f"s_add_u32 s{sT1}, s{sT1}, s{sT2}")
            I(f"v_and_b32 v{t0}, 31, v{vL}"); I(f"v_add_u32 v{t0}, s{sT1}, v{t0}")
            I(f"v_mov_b32 v{t3}, 0x800")
            I(f"v_cmp_lt_u32 vcc, v{t0}, v{t3}")
            I(f"v_cndmask_b32 v{(t1,t2)[u]}, 0, -1, vcc")
            I(f"v_and_b32 v{t0}, 0x7ff, v{t0}")
            I(f"v_lshrrev_b32 v{t3}, 5, v{t0}"); I(f"v_mul_u32_u24 v{t3}, 28672, v{t3}")
            I(f"v_and_b32 v{t0}, 31, v{t0}"); I(f"v_lshl_add_u32 v{t3}, v{t0}, 4, v{t3}")
            I(f"v_and_b32 v{t0}, 32, v{vL}"); I(f"v_lshl_add_u32 v{t3}, v{t0}, 4, v{t3}")
            I(f"s_lshl_b32 s{sT0}, s{sT0}, 10"); I(f"s_add_u32 s{sT0}, s{sT0}, {WS_HS}")
            I(f"v_add_u32 v{vSA+u}, s{sT0}, v{t3}")
            self.pump(1)
        self.gelu_tile(acc, K0, K1, outp)
        for u in range(2):
            for k in range(4): I(f"v_and_b32 v{outp+4*u+k}, v{outp+4*u+k}, v{(t1,t2)[u]}")
            I(f"buffer_store_dwordx4 {vr(outp+4*u,4)}, v{vSA+u}, {RWS}, 0 offen sc1", "hs")
        V.free(K0, 2); V.free(K1, 2); V.free(outp, 8); V.free(vSA, 2); V.free(vR2)
        q_at_join1 = self.qi
        a.label("L_s1_join")
        spare1 = (snap, q_at_join1)
        a.wait(vm="tok")
        I(f"v_readfirstlane_b32 s{sT0}, v{vTK2+1}")
        I(f"s_cmp_eq_u32 s{sT0}, 0"); I("s_cbranch_scc1 L_tok_retry")
        a.label("L_tok_ok")
        I(f"v_mov_b32 v{self.vTOK}, v{vTK2}")
        self.stamp()
        self.loop1("wk", [WK[0], WK[7]], vPQ, acc, hooks={20: lambda: self.publish(1, "hs")})
        self.release(WK)
        accv = V.alloc(16, 4)
        self.loop1("wv", [WV[0], WV[7]], vPQ, accv, swap=True)
        self.release(WV); self.bar()
        phi = V.alloc(16, 4)
        self.feature_map(acc, phi)
        I(f"s_mul_i32 s{sT0}, s{sWAVE}, 4608"); I(f"s_add_u32 s{sT0}, s{sT0}, {L_PK}")
        I(f"v_and_b32 v{t0}, 31, v{vL}"); I(f"v_mul_u32_u24 v{t0}, 144, v{t0}"); I(f"v_and_b32 v{t1}, 32, v{vL}")
        I(f"v_add3_u32 v{t0}, v{t0}, v{t1}, s{sT0}")
        for s in range(2):
            for e in range(2):
                I(f"ds_write_b128 v{t0}, {vr(phi+8*s+4*e,4)} offset:{64*s+16*e}", "pkw")
        vp = V.alloc(8, 4)
        for p in range(8): I(f"v_cvt_pk_bf16_f32 v{vp+p}, v{accv+2*p}, v{accv+2*p+1}")
        for p in range(8): I(f"v_cndmask_b32 v{vp+p}, v{vp+p}, v{vONE}, {sr(sL28,2)}")
        I(f"v_bfe_u32 v{t1}, v{vRC}, 3, 1"); I(f"v_lshlrev_b32 v{t1}, 5, v{t1}")
        I(f"v_lshrrev_b32 v{t2}, 4, v{vRC}"); I(f"v_lshl_add_u32 v{t1}, v{t2}, 3, v{t1}")
        I(f"v_mul_u32_u24 v{t2}, 144, v{vROW}"); I(f"v_add3_u32 v{t1}, v{t1}, v{t2}, s{sT0}")
        I(f"s_lshl_b32 s{sT1}, s{sTH}, 6"); I(f"v_add_u32 v{t2}, s{sT1}, v{t1}")
        I(f"s_xor_b32 s{sT1}, s{sT1}, 64"); I(f"v_add_u32 v{t1}, s{sT1}, v{t1}")
        a.wait(lg="pkw")
        R = self.aRING
        for j, pat in enumerate((t1, t2)):
            for u in range(2): self.afrag(R + 8 * j + 4 * u, pat, 16 * u * 144, (16 * u + 8) * 144, ("pkr", j, u))
        for j, ac in enumerate((accv, acc)):
            for u in range(2):
                a.wait(lg=("pkr", j, u))
                self.mfma(ac, ar(R + 8 * j + 4 * u, 4), vr(vp + 4 * u, 4), u == 0)
        V.free(vp, 8)
        vEW = V.alloc(); vER = V.alloc(); vER2 = V.alloc()
        I(f"v_add_u32 v{vEW}, s{sT0}, v{vL16}")
        I(f"s_xor_b32 s{sT1}, s{sWAVE}, 1"); I(f"s_mul_i32 s{sT1}, s{sT1}, 4608"); I(f"s_add_u32 s{sT1}, s{sT1}, {L_PK}"); I(f"v_add_u32 v{vER}, s{sT1}, v{vL16}")
        I(f"s_xor_b32 s{sT1}, s{sWAVE}, 2"); I(f"s_mul_i32 s{sT1}, s{sT1}, 4608"); I(f"s_add_u32 s{sT1}, s{sT1}, {L_PK}"); I(f"v_add_u32 v{vER2}, s{sT1}, v{vL16}")
        def exchange(send, keep, rd):
            for k in range(4): I(f"ds_write_b128 v{vEW}, {vr(send+4*k,4)} offset:{1024*k}", "exw")
            a.wait(lg="exw"); self.bar()
            for k in range(4): I(f"ds_read_b128 {vr(send+4*k,4)}, v{rd} offset:{1024*k}", ("exr", k))
            for k in range(4):
                a.wait(lg=("exr", k))
                for e in range(2): I(f"v_pk_add_f32 {vr(keep+4*k+2*e,2)}, {vr(keep+4*k+2*e,2)}, {vr(send+4*k+2*e,2)}")
        exchange(accv, acc, vER)
        I(f"s_lshl_b32 s{sT0}, s{sM}, 3"); I(f"s_add_u32 s{sT0}, s{sT0}, s{sN}"); I(f"s_lshl_b32 s{sT0}, s{sT0}, 1"); I(f"s_add_u32 s{sT0}, s{sT0}, s{sW2}")
        I(f"s_lshl_b32 s{sT0}, s{sT0}, 1"); I(f"s_add_u32 s{sT0}, s{sT0}, s{sTH}"); I(f"s_lshl_b32 s{sT0}, s{sT0}, 12"); I(f"s_add_u32 s{sT0}, s{sT0}, {WS_KVP}")
        for k in range(4): I(f"buffer_store_dwordx4 {vr(acc+4*k,4)}, v{vL16}, {RWS}, s{sT0} offen offset:{1024*k} sc1", "kvp")
        while not self.issued("wq1"): self.pump()
        self.stamp()
        I(f"s_cmp_eq_u32 s{sN}, 7"); I("s_cbranch_scc1 L_s3_skip")
        vPA = V.alloc()
        I(f"v_lshrrev_b32 v{t0}, 3, v{vL}"); I(f"v_min_u32 v{t0}, 2, v{t0}"); I(f"s_add_u32 s{sT0}, s{sM}, 31"); I(f"v_add_u32 v{t0}, s{sT0}, v{t0}"); I(f"v_and_b32 v{t0}, 31, v{t0}")
        I(f"v_and_b32 v{t1}, 7, v{vL}"); I(f"v_min_u32 v{t1}, 6, v{t1}"); I(f"v_lshl_add_u32 v{t0}, v{t0}, 3, v{t1}")
        I(f"v_lshlrev_b32 v{t0}, 7, v{t0}"); I(f"v_add_u32 v{vPA}, {WS_FLAG + 1*0x8000}, v{t0}")
        self.poll(vPA)
        aH = A.alloc(56, 4)
        I(f"s_lshl_b32 s{sT0}, s{sM}, 1"); I(f"s_add_u32 s{sT0}, s{sT0}, s{sTH}"); I(f"s_lshl_b32 s{sT0}, s{sT0}, 1"); I(f"s_add_u32 s{sT0}, s{sT0}, s{sW2}")
        I(f"s_mul_i32 s{sT0}, s{sT0}, 14336"); I(f"s_add_u32 s{sT0}, s{sT0}, {WS_HS}")
        for s in range(14):
            if s % 4 == 0 and s: I(f"s_add_u32 s{sT0}, s{sT0}, 4096")
            I(f"buffer_load_dwordx4 {ar(aH+4*s,4)}, v{vL16}, {RWS}, s{sT0} offen offset:{(s%4)*1024} sc1", ("hsl", s))
        self.bar(); self.flag_store(2)
        self.stamp()
        def two_tile_loop(name, nst, U, rowoff, bfrag, btag, ackeep, acsend, first=True, last_alt=None):
            pk = V.alloc(); ps = V.alloc()
            I(f"s_cmp_eq_u32 s{sW2}, 0"); I(f"s_mov_b32 s{sT1}, {U[1]}"); I(f"s_cselect_b32 s{sT1}, {U[0]}, s{sT1}")
            I(f"v_add_u32 v{pk}, s{sT1}, v{vPW}"); I(f"v_add_u32 v{ps}, s{sT1}, v{vPW2}")
            if last_alt:
                pk1 = V.alloc(); ps1 = V.alloc()
                I(f"v_and_b32 v{pk1}, 32, v{vL}"); I(f"v_lshlrev_b32 v{pk1}, 4, v{pk1}")
                I(f"v_sub_u32 v{ps1}, v{ps}, v{pk1}"); I(f"v_sub_u32 v{pk1}, v{pk}, v{pk1}")
            self.need(f"{name}0"); self.need(f"{name}1")
            D = 2
            def rd(s):
                b = rowoff(s) * 128; alt = last_alt and last_alt(s)
                self.afrag(R + 8 * (s % 3), pk, b, b + 1024, (name, s), pat1=pk1 if alt else None)
                self.afrag(R + 8 * (s % 3) + 4, ps, b, b + 1024, (name, s), pat1=ps1 if alt else None)
            for s in range(D): rd(s)
            for s in range(nst):
                if s + D < nst: rd(s + D)
                a.wait(lg=(name, s), vm=(btag, s))
                self.mfma(ackeep, ar(R + 8 * (s % 3), 4), bfrag(s), s == 0)
                self.mfma(acsend, ar(R + 8 * (s % 3) + 4, 4), bfrag(s), s == 0)
                self.pump(1)
            V.free(pk); V.free(ps)
            if last_alt: V.free(pk1); V.free(ps1)
        two_tile_loop("w2", 14, [W2[0], W2[7]], lambda s: 16 * s, lambda s: ar(aH + 4 * s, 4), "hsl", acc, accv)
        self.release(W2)
        A.free(aH, 56)
        exchange(accv, acc, vER2)
        vX1 = V.alloc(16, 4); x1p = V.alloc(8, 4); ss = V.alloc(4, 2)
        for p in range(8):
            I(f"v_lshlrev_b32 v{vX1+2*p}, 16, v{vRES+p}"); I(f"v_and_b32 v{vX1+2*p+1}, 0xffff0000, v{vRES+p}")
        for p in range(8): I(f"v_pk_add_f32 {vr(acc+2*p,2)}, {vr(acc+2*p,2)}, {vr(vX1+2*p,2)}")
        for p in range(8): I(f"v_cvt_pk_bf16_f32 v{x1p+p}, v{acc+2*p}, v{acc+2*p+1}")
        I(f"s_lshl_b32 s{sT0}, s{sM}, 1"); I(f"s_add_u32 s{sT0}, s{sT0}, s{sTH}"); I(f"s_mul_i32 s{sT0}, s{sT0}, 14")
        I(f"s_lshl_b32 s{sT1}, s{sN}, 1"); I(f"s_add_u32 s{sT0}, s{sT0}, s{sT1}"); I(f"s_add_u32 s{sT0}, s{sT0}, s{sW2}")
        I(f"s_lshl_b32 s{sT1}, s{sT0}, 11"); I(f"s_add_u32 s{sT1}, s{sT1}, {WS_X1}")
        for u in range(2): I(f"buffer_store_dwordx4 {vr(x1p+4*u,4)}, v{vL16}, {RWS}, s{sT1} offen offset:{1024*u} sc1", "x1")
        for k in range(4): I(f"v_mov_b32 v{ss+k}, 0")
        for p in range(8):
            o = 2 * (p & 1)
            I(f"v_dot2c_f32_bf16 v{ss+o}, v{x1p+p}, v{vONE}"); I(f"v_dot2c_f32_bf16 v{ss+o+1}, v{x1p+p}, v{x1p+p}")
        I(f"v_pk_add_f32 {vr(ss,2)}, {vr(ss,2)}, {vr(ss+2,2)}")
        I(f"v_mov_b32 v{ss+2}, v{ss}"); I(f"v_mov_b32 v{ss+3}, v{ss+1}")
        I(f"v_permlane32_swap_b32 v{ss}, v{ss+2}"); I(f"v_permlane32_swap_b32 v{ss+1}, v{ss+3}")
        I(f"v_pk_add_f32 {vr(ss,2)}, {vr(ss,2)}, {vr(ss+2,2)}")
        I(f"s_lshl_b32 s{sT1}, s{sT0}, 8"); I(f"s_add_u32 s{sT1}, s{sT1}, {WS_ST}")
        I(f"v_and_b32 v{t0}, 31, v{vL}"); I(f"v_lshlrev_b32 v{t0}, 3, v{t0}")
        I("s_mov_b32 exec_hi, 0")
        I(f"buffer_store_dwordx2 {vr(ss,2)}, v{t0}, {RWS}, s{sT1} offen sc1", "x1")
        I("s_mov_b64 exec, -1")
        for p in range(8):
            I(f"v_lshlrev_b32 v{vX1+2*p}, 16, v{x1p+p}"); I(f"v_and_b32 v{vX1+2*p+1}, 0xffff0000, v{x1p+p}")
        V.free(x1p, 8); V.free(ss, 4); V.free(vRES, 8)
        a.label("L_s3_join")
        self.stamp()
        self.loop1("wq", [WQ[0], WQ[7]], vPQ, acc, hooks={20: lambda: self.publish(3, "x1")})
        self.release(WQ); self.bar()
        self.feature_map(acc, phi)
        self.drop_pat(vPQ)
        A.free(aX, 112); A.free(self.aPHI, 8)
        self.stamp()
        I(f"s_cmp_eq_u32 s{sN}, 7"); I("s_cbranch_scc1 L_reduce")
        I(f"v_bfe_u32 v{t0}, v{vL}, 3, 1"); I(f"s_lshl_b32 s{sT0}, s{sP}, 1"); I(f"v_add_u32 v{t0}, s{sT0}, v{t0}")
        I(f"v_and_b32 v{t1}, 7, v{vL}"); I(f"v_min_u32 v{t1}, 6, v{t1}"); I(f"v_lshl_add_u32 v{t0}, v{t0}, 3, v{t1}")
        vPG = V.alloc()
        I(f"v_lshlrev_b32 v{vPG}, 7, v{t0}"); I(f"v_add_u32 v{vPA}, {WS_FLAG + 3*0x8000}, v{vPG}")
        I(f"v_and_b32 v{t0}, 1, v{vL}"); I(f"s_lshl_b32 s{sT0}, s{sJ}, 1"); I(f"v_add_u32 v{t0}, s{sT0}, v{t0}")
        I(f"v_lshlrev_b32 v{t0}, 10, v{t0}"); I(f"v_add_u32 v{t0}, {WS_FLAG + 1*0x8000 + 7*128}, v{t0}")
        I(f"v_and_b32 v{t1}, 16, v{vL}"); I(f"v_cmp_eq_u32 vcc, 0, v{t1}"); I(f"v_cndmask_b32 v{vPA}, v{t0}, v{vPA}, vcc")
        vP3 = [V.alloc() for _ in range(4)]
        I(f"v_and_b32 v{t0}, 3, v{vROW}"); I(f"v_lshlrev_b32 v{t0}, 6, v{t0}"); I(f"v_lshl_add_u32 v{t1}, v{vROW}, 8, v{vRC}")
        I(f"v_add_u32 v{vP3[0]}, v{t0}, v{t1}")
        for k in range(1, 4): I(f"v_xor_b32 v{vP3[k]}, {64*k}, v{vP3[0]}")
        self.poll(vPA)
        aB = A.alloc(112, 4)
        I(f"s_lshl_b32 s{sT2}, s{sP}, 2"); I(f"s_add_u32 s{sT2}, s{sT2}, s{sWAVE}")
        I(f"s_mul_i32 s{sT0}, s{sT2}, 28672"); I(f"s_add_u32 s{sT0}, s{sT0}, {WS_X1}")
        for s in range(28):
            if s % 4 == 0 and s: I(f"s_add_u32 s{sT0}, s{sT0}, 4096")
            I(f"buffer_load_dwordx4 {ar(aB+4*s,4)}, v{vL16}, {RWS}, s{sT0} offen offset:{(s%4)*1024} sc1", ("x1l", s))
        vST = V.alloc(14, 2); vCS = V.alloc(64, 4)
        I(f"s_mul_i32 s{sT0}, s{sT2}, 3584"); I(f"s_add_u32 s{sT0}, s{sT0}, {WS_ST}")
        I(f"v_and_b32 v{t0}, 31, v{vL}"); I(f"v_lshlrev_b32 v{t0}, 3, v{t0}"); I(f"v_lshrrev_b32 v{t1}, 5, v{vL}"); I(f"v_mul_u32_u24 v{t2}, 1792, v{t1}"); I(f"v_add_u32 v{t0}, v{t0}, v{t2}")
        for k in range(7): I(f"buffer_load_dwordx2 {vr(vST+2*k,2)}, v{t0}, {RWS}, s{sT0} offen offset:{256*k} sc1", "stl")
        I(f"s_lshl_b32 s{sT0}, s{sJ}, 9"); I(f"s_add_u32 s{sT0}, s{sT0}, {WS_CS}"); I(f"v_lshlrev_b32 v{t1}, 4, v{t1}")
        for k in range(16): I(f"buffer_load_dwordx4 {vr(vCS+4*k,4)}, v{t1}, {RWS}, s{sT0} offen offset:{32*k} sc1", "stl")
        self.stamp()
        acc5 = [acc, accv, V.alloc(16, 4), V.alloc(16, 4)]
        def rd5(s):
            if s % 7 == 0: self.need(f"w3{s//7}")
            for k in range(4): self.afrag(R + 16 * (s % 2) + 4 * k, vP3[k], W3[s], W3[s] + 2048, ("w3", s, k))
        rd5(0)
        for s in range(28):
            a.wait(vm=("x1l", s))
            for k in range(4):
                a.wait(lg=("w3", s, k))
                self.mfma(acc5[k], ar(R + 16 * (s % 2) + 4 * k, 4), ar(aB + 4 * s, 4), s == 0)
                if k == 0 and s + 1 < 28: rd5(s + 1)
                if k == 2: self.pump(1)
        self.release(W3); self.bar()
        for p in vP3: self.drop_pat(p)
        A.free(aB, 112)
        self.stamp()
        a.wait(vm="stl")
        for k in range(1, 7): I(f"v_pk_add_f32 {vr(vST,2)}, {vr(vST,2)}, {vr(vST+2*k,2)}")
        I(f"v_mov_b32 v{vST+2}, v{vST}"); I(f"v_mov_b32 v{vST+3}, v{vST+1}")
        I(f"v_permlane32_swap_b32 v{vST}, v{vST+2}"); I(f"v_permlane32_swap_b32 v{vST+1}, v{vST+3}")
        I(f"v_pk_add_f32 {vr(vST,2)}, {vr(vST,2)}, {vr(vST+2,2)}")
        K0 = vST + 4; K1 = vST + 6
        I(f"v_mul_f32 v{K1+1}, {hx(f2u(-1/448))}, v{vST}")
        I(f"v_mul_f32 v{vST+1}, {hx(f2u(1/448))}, v{vST+1}")
        I(f"v_fma_f32 v{vST+1}, -v{K1+1}, v{K1+1}, v{vST+1}"); I(f"v_max_f32 v{vST+1}, 0, v{vST+1}")
        I(f"v_add_f32 v{vST+1}, {hx(f2u(1e-5))}, v{vST+1}"); I(f"v_rsq_f32 v{vST+1}, v{vST+1}")
        I("s_nop 0")
        self.gelu_consts(vST + 1, K0, K1)
        I(f"s_mul_i32 s{sT0}, s{sT2}, 14"); I(f"s_add_u32 s{sT0}, s{sT0}, s{sJ}"); I(f"s_lshl_b32 s{sT0}, s{sT0}, 13"); I(f"s_add_u32 s{sT0}, s{sT0}, {WS_H3}")
        outp = [V.alloc(8, 4), V.alloc(8, 4)]
        for k in range(4):
            self.gelu_tile(acc5[k], K0, K1, outp[k & 1], cs=vCS + 16 * k)
            if k == 2: I(f"s_add_u32 s{sT0}, s{sT0}, 4096")
            for u in range(2): I(f"buffer_store_dwordx4 {vr(outp[k&1]+4*u,4)}, v{vL16}, {RWS}, s{sT0} offen offset:{(k&1)*2048+1024*u} sc1", "h3")
        for o in outp: V.free(o, 8)
        V.free(vST, 14); V.free(vCS, 64)
        self.publish(5, "h3")
        a.label("L_s6")
        self.stamp()
        I(f"s_lshl_b32 s{sT2}, s{sN}, 1"); I(f"s_add_u32 s{sT2}, s{sT2}, s{sW2}")
        I(f"v_and_b32 v{t0}, 1, v{vL}"); I(f"s_lshl_b32 s{sT0}, s{sT2}, 1"); I(f"v_add_u32 v{t0}, s{sT0}, v{t0}")
        I(f"v_lshlrev_b32 v{t0}, 10, v{t0}"); I(f"v_add_u32 v{vPA}, {WS_FLAG + 4*0x8000 + 7*128}, v{t0}")
        self.poll(vPA)
        I(f"s_lshl_b32 s{sT0}, s{sT2}, 12"); I(f"s_add_u32 s{sT0}, s{sT0}, {WS_KVF}")
        for k in range(4): I(f"buffer_load_dwordx4 {ar(R+4*k,4)}, v{vL16}, {RWS}, s{sT0} offen offset:{1024*k} sc1", ("kvl", k))
        for k in range(4):
            a.wait(vm=("kvl", k))
            self.mfma(acc, ar(R + 4 * k, 4), vr(phi + 4 * k, 4), k == 0)
        dn = V.alloc(2)
        I(f"v_add_f32 v{dn+1}, {hx(f2u(1e-6))}, v{acc+12}")
        I(f"v_rcp_f32 v{dn+1}, v{dn+1}")
        I(f"v_mov_b32 v{dn}, v{dn+1}")
        I(f"v_permlane32_swap_b32 v{dn+1}, v{dn}")
        I(f"v_mul_f32 v{dn+1}, v{dn}, v{self.vFM}")
        for p in range(8):
            sel = "op_sel:[0,1] op_sel_hi:[1,1]" if p >= 6 else "op_sel_hi:[1,0]"
            I(f"v_pk_mul_f32 {vr(acc+2*p,2)}, {vr(acc+2*p,2)}, {vr(dn,2)} {sel}")
        for p in range(8): I(f"v_cvt_pk_bf16_f32 v{phi+p}, v{acc+2*p}, v{acc+2*p+1}")
        I(f"v_and_b32 v{phi+6}, v{phi+6}, v{self.vMLO}"); I(f"v_and_b32 v{phi+7}, v{phi+7}, v{self.vMLO}")
        V.free(dn, 2)
        I(f"s_lshl_b32 s{sT0}, s{sM}, 1"); I(f"s_add_u32 s{sT0}, s{sT0}, s{sTH}"); I(f"s_lshl_b32 s{sT0}, s{sT0}, 4"); I(f"s_add_u32 s{sT0}, s{sT0}, s{sT2}")
        I(f"s_lshl_b32 s{sT0}, s{sT0}, 11"); I(f"s_add_u32 s{sT0}, s{sT0}, {WS_O}")
        for u in range(2): I(f"buffer_store_dwordx4 {vr(phi+4*u,4)}, v{vL16}, {RWS}, s{sT0} offen offset:{1024*u} sc1", "o")
        I(f"s_cmp_eq_u32 s{sN}, 7"); I("s_cbranch_scc1 L_spare_end")
        self.stamp()
        I(f"v_add_u32 v{vPA}, {WS_FLAG + 5*0x8000}, v{vPG}")
        vXA = V.alloc(); vXF = V.alloc(8, 4)
        I(f"v_and_b32 v{t0}, 31, v{vL}"); I(f"v_mul_u32_u24 v{t0}, 896, v{t0}"); I(f"v_lshrrev_b32 v{t1}, 5, v{vL}"); I(f"v_lshl_add_u32 v{t0}, v{t1}, 4, v{t0}")
        I(f"s_lshl_b32 s{sT0}, s{sM}, 1"); I(f"s_add_u32 s{sT0}, s{sT0}, s{sTH}"); I(f"s_mul_i32 s{sT0}, s{sT0}, {32*896}")
        I(f"s_lshl_b32 s{sT1}, s{sN}, 1"); I(f"s_add_u32 s{sT1}, s{sT1}, s{sW2}"); I(f"s_lshl_b32 s{sT1}, s{sT1}, 6"); I(f"s_add_u32 s{sT0}, s{sT0}, s{sT1}")
        I(f"v_add_u32 v{vXA}, s{sT0}, v{t0}")
        for i in range(2): I(f"buffer_load_dwordx4 {vr(vXF+4*i,4)}, v{vXA}, {RX}, 0 offen offset:{32*i}", "xf")
        self.poll(vPA)
        aB = A.alloc(224, 4)
        I(f"s_lshl_b32 s{sT0}, s{sM}, 1"); I(f"s_add_u32 s{sT0}, s{sT0}, s{sTH}"); I(f"s_xor_b32 s{sT1}, s{sT0}, 1")
        for x in (sT0, sT1):
            I(f"s_lshl_b32 s{x}, s{x}, 2"); I(f"s_add_u32 s{x}, s{x}, s{sWAVE}"); I(f"s_mul_i32 s{x}, s{x}, 28672"); I(f"s_add_u32 s{x}, s{x}, {WS_H3}")
        def ldb(s):
            if s % 4 == 0 and s:
                I(f"s_add_u32 s{sT0}, s{sT0}, 4096"); I(f"s_add_u32 s{sT1}, s{sT1}, 4096")
            for i, x in enumerate((sT0, sT1)):
                I(f"buffer_load_dwordx4 {ar(aB+8*s+4*i,4)}, v{vL16}, {RWS}, s{x} offen offset:{(s%4)*1024} sc1", ("h3l", s))
        DB = 8
        for s in range(DB): ldb(s)
        self.bar(); self.flag_store(6)
        self.stamp()
        pk = V.alloc(); ps = V.alloc()
        I(f"v_add_u32 v{pk}, s{sQUART}, v{vPW}"); I(f"v_add_u32 v{ps}, s{sQUART}, v{vPW2}")
        def rd7(s):
            self.need(("w4", 2 * s + 1), priv=True)
            for j, pat in enumerate((pk, ps)): self.afrag(R + 8 * (s % 3) + 4 * j, pat, W4[2 * s], W4[2 * s + 1], ("w4r", s))
            self.release([W4[2 * s], W4[2 * s + 1]])
        rd7(0); rd7(1)
        for s in range(28):
            if s + 2 < 28: rd7(s + 2)
            a.wait(lg=("w4r", s), vm=("h3l", s))
            for i in range(2):
                for j in range(2):
                    self.mfma(acc5[2 * i + j], ar(R + 8 * (s % 3) + 4 * j, 4), ar(aB + 8 * s + 4 * i, 4), s == 0)
                    if i == 0 and j == 0 and s + DB < 28: ldb(s + DB)
                    if i == 1: self.pump(1)
        self.drop_pat(pk); self.drop_pat(ps)
        self.stamp()
        I(f"v_and_b32 v{t0}, 7, v{vL}"); I(f"s_lshl_b32 s{sT0}, s{sM}, 3"); I(f"v_add_u32 v{t0}, s{sT0}, v{t0}")
        I(f"v_lshlrev_b32 v{t0}, 7, v{t0}"); I(f"v_add_u32 v{vPA}, {WS_FLAG + 6*0x8000}, v{t0}")
        a.wait(lg=("w4r", 27))
        while not self.issued("wo1"): self.pump()
        self.poll(vPA)
        I(f"s_lshl_b32 s{sT0}, s{sM}, 1"); I(f"s_add_u32 s{sT0}, s{sT0}, s{sTH}"); I(f"s_lshl_b32 s{sT0}, s{sT0}, 1"); I(f"s_add_u32 s{sT0}, s{sT0}, s{sW2}")
        I(f"s_lshl_b32 s{sT0}, s{sT0}, 14"); I(f"s_add_u32 s{sT0}, s{sT0}, {WS_O}")
        for s in range(16):
            if s % 4 == 0 and s: I(f"s_add_u32 s{sT0}, s{sT0}, 4096")
            I(f"buffer_load_dwordx4 {ar(aB+4*s,4)}, v{vL16}, {RWS}, s{sT0} offen offset:{(s%4)*1024} sc1", ("ol", s))
        sk = V.alloc(16, 4); ssd = V.alloc(16, 4); nb0 = self.nbar
        two_tile_loop("wo", 16, [WO[0], WO[7]], lambda s: 28 * (s >> 1) + 16 * (s & 1), lambda s: ar(aB + 4 * s, 4), "ol", sk, ssd, last_alt=lambda s: s & 1)
        self.stamp()
        assert self.nbar > nb0
        wo_slots = set(x // 4096 for x in WO)
        free_slots = [x for x in range(NSLOT) if x not in wo_slots]
        runs = []
        for x in free_slots:
            if runs and runs[-1][-1] == x - 1 and len(runs[-1]) < 4: runs[-1].append(x)
            else: runs.append([x])
        runs = [r for r in runs if len(r) == 4]; assert len(runs) >= 4
        wr = V.alloc(); rd = [V.alloc() for _ in range(3)]
        I(f"s_lshl_b32 s{sT0}, s{sWAVE}, 12"); I(f"v_add_u32 v{wr}, s{sT0}, v{vL16}")
        for k, x in enumerate((2, 1, 3)): I(f"v_xor_b32 v{rd[k]}, {x << 12}, v{wr}")
        msgs = [(acc5[1], rd[0], acc5[0]), (acc5[2], rd[1], acc5[0]), (acc5[3], rd[2], acc5[0]), (ssd, rd[0], sk)]
        for c, (src, _, _) in enumerate(msgs):
            for k in range(4):
                v, o = self.laddr(wr, runs[c][0] * 4096 + 1024 * k)
                I(f"ds_write_b128 {v}, {vr(src+4*k,4)} offset:{o}", "fw")
        for p in range(8): I(f"v_pk_add_f32 {vr(acc5[0]+2*p,2)}, {vr(acc5[0]+2*p,2)}, {vr(vX1+2*p,2)}")
        a.wait(vm="xf")
        for i in range(2):
            I(f"v_permlane32_swap_b32 v{vXF+4*i}, v{vXF+4*i+2}"); I(f"v_permlane32_swap_b32 v{vXF+4*i+1}, v{vXF+4*i+3}")
        for p in range(8):
            I(f"v_lshlrev_b32 v{vX1+2*p}, 16, v{vXF+p}"); I(f"v_and_b32 v{vX1+2*p+1}, 0xffff0000, v{vXF+p}")
        a.wait(lg="fw"); self.bar()
        for c, (src, r_, _) in enumerate(msgs):
            for k in range(4):
                v, o = self.laddr(r_, runs[c][0] * 4096 + 1024 * k)
                I(f"ds_read_b128 {vr(src+4*k,4)}, {v} offset:{o}", ("fr", c, k))
        for c, (src, _, dst) in enumerate(msgs):
            for k in range(4):
                a.wait(lg=("fr", c, k))
                for e in range(2): I(f"v_pk_add_f32 {vr(dst+4*k+2*e,2)}, {vr(dst+4*k+2*e,2)}, {vr(src+4*k+2*e,2)}")
        b = acc5[0]; e_ = acc5[1]
        for p in range(8): I(f"v_pk_mul_f32 {vr(e_+2*p,2)}, {vr(b+2*p,2)}, {sr(sL2E,2)} neg_lo:[1,0] neg_hi:[1,0]")
        for k in range(16): I(f"v_exp_f32 v{e_+k}, v{e_+k}")
        for p in range(8): I(f"v_pk_add_f32 {vr(e_+2*p,2)}, {vr(e_+2*p,2)}, 1.0 op_sel_hi:[1,0]")
        for k in range(16): I(f"v_rcp_f32 v{e_+k}, v{e_+k}")
        for p in range(8): I(f"v_pk_mul_f32 {vr(b+2*p,2)}, {vr(b+2*p,2)}, {vr(sk+2*p,2)}")
        for p in range(8): I(f"v_pk_fma_f32 {vr(b+2*p,2)}, {vr(b+2*p,2)}, {vr(e_+2*p,2)}, {vr(vX1+2*p,2)}")
        for p in range(8): I(f"v_cvt_pk_bf16_f32 v{vXF+p}, v{b+2*p}, v{b+2*p+1}")
        for i in range(2):
            I(f"v_permlane32_swap_b32 v{vXF+4*i}, v{vXF+4*i+2}"); I(f"v_permlane32_swap_b32 v{vXF+4*i+1}, v{vXF+4*i+3}")
            I(f"buffer_store_dwordx4 {vr(vXF+4*i,4)}, v{vXA}, {ROUT}, 0 offen offset:{32*i}", "out")
        self.stamp()
        a.label("L_fin")
        if self.prof:
            I("s_waitcnt vmcnt(0)")
            I("s_memrealtime s[100:101]"); I("s_waitcnt lgkmcnt(0)")
            I(f"s_lshl_b32 s{sT0}, s2, 2"); I(f"s_add_u32 s{sT0}, s{sT0}, s{sWAVE}"); I(f"s_lshl_b32 s{sT0}, s{sT0}, 7"); I(f"s_add_u32 s{sT0}, s{sT0}, {WS_PROF}")
            I("s_mov_b64 exec, 1")
            for k in range(20):
                I(f"v_mov_b32 v{t0}, s{sPROF+k}"); I(f"buffer_store_dword v{t0}, v{vZ}, {RWS}, s{sT0} offen offset:{4*k}")
            for k, s_ in enumerate((98, 100)):
                I(f"v_mov_b32 v{t0}, s{s_}"); I(f"buffer_store_dword v{t0}, v{vZ}, {RWS}, s{sT0} offen offset:{80+4*k}")
        a.label("L_end")
        I("s_endpgm")

        a.label("L_abort")
        I(f"v_mov_b32 v{t0}, 0xdead"); I(f"buffer_store_dword v{t0}, v{vZ}, {RDBG}, 0 offen offset:16")
        I("s_endpgm")
        a.label("L_tok_retry")
        I(f"s_mov_b32 s{sCNT}, {POLL_MAX}")
        a.label("L_tok_loop")
        I(f"buffer_load_dwordx2 {vr(vTK2,2)}, v{vZ}, {RDBG}, 0 offen sc1")
        I(f"s_sub_u32 s{sCNT}, s{sCNT}, 1"); I("s_cbranch_scc1 L_abort")
        I("s_waitcnt vmcnt(0)")
        I(f"v_readfirstlane_b32 s{sT0}, v{vTK2+1}")
        I(f"s_cmp_eq_u32 s{sT0}, 0"); I("s_cbranch_scc1 L_tok_loop")
        I("s_branch L_tok_ok")
        a.label("L_s1_spare")
        self.restore(spare1[0])
        self.loop1("w1", [W1[0], W1[7]], vPW, acc, pre=xpre, bfrag=lambda s: vr(vONE, 4))
        self.release(XN + W1); a.wait(lg=("w1", 27)); self.bar()
        while self.qi < spare1[1]: self.pump()
        I(f"s_lshl_b32 s{sT0}, s{sM}, 1"); I(f"s_add_u32 s{sT0}, s{sT0}, s{sW2}"); I(f"s_lshl_b32 s{sT0}, s{sT0}, 7"); I(f"s_add_u32 s{sT0}, s{sT0}, {WS_CS}")
        I(f"v_lshrrev_b32 v{t0}, 1, v{vL}")
        I("s_mov_b32 exec_lo, 1"); I("s_mov_b32 exec_hi, 1")
        for k in range(4): I(f"buffer_store_dwordx4 {vr(acc+4*k,4)}, v{t0}, {RWS}, s{sT0} offen offset:{32*k} sc1")
        I("s_mov_b64 exec, -1")
        I("s_waitcnt vmcnt(0)")
        I("s_branch L_s1_join")
        a.label("L_s3_skip")
        I("s_waitcnt vmcnt(0) lgkmcnt(0)"); I("s_barrier"); self.flag_store(2)
        I("s_branch L_s3_join")
        a.label("L_reduce")
        I(f"v_and_b32 v{t0}, 31, v{vL}"); I(f"v_lshlrev_b32 v{t0}, 3, v{t0}"); I(f"s_lshr_b32 s{sT0}, s{sM}, 2"); I(f"v_add_u32 v{t0}, s{sT0}, v{t0}")
        I(f"v_lshlrev_b32 v{t0}, 7, v{t0}"); I(f"v_add_u32 v{vPA}, {WS_FLAG + 2*0x8000}, v{t0}")
        self.V = V = RA("v", 256, 128)
        assert max(phi + 16, vPA + 1, acc + 16) <= 128
        self.poll(vPA)
        I(f"s_lshl_b32 s{sT0}, s{sM}, 12"); I(f"s_add_u32 s{sT0}, s{sT0}, s{sQUART}"); I(f"s_add_u32 s{sT0}, s{sT0}, {WS_KVP}")
        for k in range(32):
            I(f"buffer_load_dwordx4 {vr(128+4*k,4)}, v{vL16}, {RWS}, s{sT0} offen sc1", ("rp", k))
            I(f"s_add_u32 s{sT0}, s{sT0}, {16*8192}")
        for k in range(1, 32):
            a.wait(vm=("rp", k))
            for e in range(2): I(f"v_pk_add_f32 {vr(128+2*e,2)}, {vr(128+2*e,2)}, {vr(128+4*k+2*e,2)}")
        I("v_cvt_pk_bf16_f32 v132, v128, v129"); I("v_cvt_pk_bf16_f32 v133, v130, v131")
        I(f"s_lshl_b32 s{sT0}, s{sM}, 1"); I(f"s_add_u32 s{sT0}, s{sT0}, s{sW2}"); I(f"s_lshl_b32 s{sT0}, s{sT0}, 10")
        I(f"s_lshl_b32 s{sT1}, s{sTH}, 3"); I(f"s_add_u32 s{sT0}, s{sT0}, s{sT1}"); I(f"s_add_u32 s{sT0}, s{sT0}, {WS_KVF}")
        I(f"buffer_store_dwordx2 v[132:133], v{vL16}, {RWS}, s{sT0} offen sc1")
        I("s_waitcnt vmcnt(0)"); I("s_barrier"); self.flag_store(4)
        I("s_branch L_s6")
        a.label("L_spare_end")
        I("s_waitcnt vmcnt(0)"); I("s_barrier"); self.flag_store(6)
        I("s_branch L_fin")
        a.raw('.section .rodata,"a"'); a.raw(".p2align 6"); a.raw(f".amdhsa_kernel {NAME}_kernel")
        a.raw("  .amdhsa_next_free_vgpr 512"); a.raw("  .amdhsa_next_free_sgpr 102"); a.raw("  .amdhsa_accum_offset 256")
        a.raw("  .amdhsa_group_segment_fixed_size 0"); a.raw("  .amdhsa_kernarg_size 96"); a.raw("  .amdhsa_user_sgpr_count 2")
        a.raw("  .amdhsa_user_sgpr_kernarg_segment_ptr 1"); a.raw("  .amdhsa_system_sgpr_workgroup_id_x 1"); a.raw(".end_amdhsa_kernel")
        return a.text()

    def snapshot(self):
        import copy
        a = self.a
        return dict(vm=list(a.vm), vm_done=a.vm_done, lg=list(a.lg), lg_done=a.lg_done, hist=list(a.hist),
                    slots=copy.deepcopy(self.slots), qi=self.qi, synced=self.synced_vm, win=dict(self.win), used=list(self.V.used))
    def restore(self, s):
        import copy
        a = self.a
        a.vm = list(s["vm"]); a.vm_done = s["vm_done"]; a.lg = list(s["lg"]); a.lg_done = s["lg_done"]; a.hist = list(s["hist"])
        self.slots = copy.deepcopy(s["slots"]); self.qi = s["qi"]; self.synced_vm = s["synced"]; self.win = dict(s["win"]); self.V.used = list(s["used"])

if __name__ == "__main__":
    prof = "--prof" in sys.argv
    out = [x for x in sys.argv[1:] if not x.startswith("--")][0]
    g = Gen(prof=prof)
    txt = g.build()
    hdr = open(f"cdna_kernels/{NAME}.s.ref").read().split("; Override")[0] if "--hdr" in sys.argv else ""
    open(out, "w").write(hdr + txt)
    print("instrs", g.a.count, "nops", g.a.nops, "vgpr hi", g.V.hi, "agpr hi", g.A.hi, file=sys.stderr)
```

```python
import re

TRANS = ("v_exp_f32", "v_log_f32", "v_rcp_f32", "v_rsq_f32", "v_sqrt_f32", "v_sin_f32", "v_cos_f32")
REG_RE = re.compile(r"^(-)?(?:abs\()?\|?([vas])(?:(\d+)|\[(\d+):(\d+)\])\|?\)?$")

def parse_reg(tok):
    tok = tok.strip()
    if tok in ("vcc",): return [("s", 106), ("s", 107)]
    if tok == "vcc_lo": return [("s", 106)]
    if tok == "vcc_hi": return [("s", 107)]
    if tok == "exec": return [("s", 126), ("s", 127)]
    if tok == "exec_lo": return [("s", 126)]
    if tok == "exec_hi": return [("s", 127)]
    if tok == "m0": return [("s", 124)]
    m = REG_RE.match(tok)
    if not m: return []
    k = m.group(2)
    if m.group(3) is not None: return [(k, int(m.group(3)))]
    return [(k, i) for i in range(int(m.group(4)), int(m.group(5)) + 1)]

def split_ops(rest):
    ops, depth, cur = [], 0, ""
    for ch in rest:
        if ch in "[(": depth += 1
        if ch in "])": depth -= 1
        if ch == "," and depth == 0:
            ops.append(cur.strip()); cur = ""
        else: cur += ch
    if cur.strip(): ops.append(cur.strip())
    mods = ""
    if ops:
        parts = ops[-1].split(None, 1)
        ops[-1] = parts[0]
        mods = parts[1] if len(parts) > 1 else ""
    return ops, mods

class Ins:
    __slots__ = ("op", "kind", "wr", "rd", "rdA", "rdC", "states", "text", "passes", "wide", "mods")

def classify(text):
    t = text.split(";")[0].strip()
    parts = t.split(None, 1)
    op = parts[0]; rest = parts[1] if len(parts) > 1 else ""
    ops, mods = split_ops(rest)
    i = Ins(); i.op = op; i.text = text; i.states = 1; i.wr = set(); i.rd = set(); i.rdA = set(); i.rdC = []
    i.passes = 0; i.wide = False; i.mods = mods
    R = [parse_reg(o) for o in ops]
    base = re.sub(r"_(e32|e64|dpp|sdwa)$", "", op)
    if op == "s_nop":
        i.kind = "nop"; i.states = int(ops[0], 0) + 1
    elif op.startswith("v_mfma"):
        i.kind = "mfma"; i.passes = 8 if "32x32" in op else 4
        i.wr = set(R[0]); i.rdA = set(R[1]) | set(R[2]); i.rdC = R[3]; i.rd = i.rdA | set(R[3])
    elif op.startswith("v_"):
        i.kind = "valu"
        if base in TRANS: i.kind = "trans"
        if base.startswith("v_dot"): i.kind = "dot"
        i.wr = set(R[0])
        for r in R[1:]: i.rd |= set(r)
        if base.startswith("v_permlane") and "swap" in base:
            i.wr |= set(R[1]); i.rd |= set(R[0])
        if base in ("v_fmac_f32", "v_dot2c_f32_bf16", "v_pk_fmac_f16"): i.rd |= set(R[0])
        if base.startswith("v_add_co") or base.startswith("v_sub_co") or base.startswith("v_addc_co"):
            i.wr |= set(R[1])
        if base == "v_cndmask_b32" and len(ops) == 3: i.rd |= {("s", 106), ("s", 107)}
        if base == "v_dot2_f32_bf16": i.rdC = R[3]
        if base == "v_dot2c_f32_bf16": i.rdC = R[0]
    elif op.startswith("ds_"):
        i.kind = "ds"
        if op.startswith("ds_read") or op.startswith("ds_bpermute") or op.startswith("ds_swizzle"):
            i.wr = set(R[0])
            for r in R[1:]: i.rd |= set(r)
        else:
            for r in R: i.rd |= set(r)
    elif op.startswith("buffer_") or op.startswith("global_"):
        i.kind = "vmem"
        lds = re.search(r"\blds\b", mods) is not None
        if "load" in op and not lds:
            i.wr = set(R[0])
            for r in R[1:]: i.rd |= set(r)
        else:
            for r in R: i.rd |= set(r)
            if lds: i.rd |= {("s", 124)}; i.kind = "vmem"; i.rdA = {("s", 124)}
            if "store" in op and ("x4" in op or "x3" in op):
                i.wide = True; i.rdC = R[0] if op.startswith("buffer_") else R[1]
            if "atomic" in op and re.search(r"\bsc0\b", mods): i.wr = set(R[0])
    elif op.startswith("s_"):
        i.kind = "salu"
        if op.startswith("s_cmp") or op.startswith("s_bitcmp") or op.startswith("s_cbranch") or op in ("s_branch", "s_waitcnt", "s_barrier", "s_endpgm", "s_setprio", "s_sleep"):
            for r in R: i.rd |= set(r)
        else:
            if R: i.wr = set(R[0])
            for r in R[1:]: i.rd |= set(r)
    else:
        raise ValueError("unknown instr " + text)
    return i

VALU_KINDS = ("valu", "trans", "dot")

def need(p, c):
    n = 0
    pv = {r for r in p.wr if r[0] != "s"}
    ps = {r for r in p.wr if r[0] == "s"}
    cbase = re.sub(r"_(e32|e64|dpp|sdwa)$", "", c.op)
    if p.kind in VALU_KINDS:
        if c.kind == "mfma" and pv & c.rd: n = max(n, 2)
        if p.kind == "trans" and c.kind in ("valu", "dot") and pv & c.rd: n = max(n, 1)
        if ps:
            if c.kind == "vmem" and ps & c.rd: n = max(n, 5)
            if c.kind in VALU_KINDS and ps & c.rd: n = max(n, 2)
            if c.kind == "salu" and ps & c.rd: n = max(n, 1)
        if cbase in ("v_readfirstlane_b32", "v_readlane_b32") and pv & c.rd: n = max(n, 1)
        if (cbase.startswith("v_permlane") or c.op.endswith("_dpp")) and pv & c.rd: n = max(n, 2)
        if p.kind == "dot" and (pv & (c.rd | c.wr)) and c.kind != "nop":
            if c.op == p.op and not (pv & (c.rd - set(c.rdC))) : pass
            else: n = max(n, 3)
        if p.op.endswith("_sdwa") and c.kind in VALU_KINDS and pv & (c.rd | c.wr): n = max(n, 1)
    if p.kind == "mfma":
        big = 12 if p.passes == 8 else 8
        ovl = 10 if p.passes == 8 else 6
        war = 7 if p.passes == 8 else 3
        if c.kind == "mfma":
            if pv & c.rdA: n = max(n, big)
            if pv & set(c.rdC):
                if set(c.rdC) == pv and c.passes == p.passes: pass
                else: n = max(n, ovl)
            elif pv & c.wr: n = max(n, big)
        elif c.kind in VALU_KINDS or c.kind in ("ds", "vmem"):
            if pv & (c.rd | c.wr): n = max(n, big)
            if c.kind in VALU_KINDS and set(p.rdC) & c.wr: n = max(n, war)
    if p.kind == "vmem" and p.wide and set(p.rdC) & c.wr:
        n = max(n, 2 if c.kind in VALU_KINDS or c.kind == "mfma" else 1)
    if p.kind == "salu" and ("s", 124) in p.wr and c.kind == "vmem" and ("s", 124) in c.rdA: n = max(n, 1)
    return n

class Asm:
    def __init__(self):
        self.out = []; self.hist = []
        self.vm = []; self.vm_done = 0
        self.lg = []; self.lg_done = 0
        self.nops = 0; self.count = 0
        self.t = 0; self.mfma_free = 0; self.ta_free = 0; self.vm_t = []; self.lg_t = []; self.mres = {}
        self.scc_live = 0
    def raw(self, s): self.out.append(s)
    def label(self, name):
        self.out.append(name + ":")
    def comment(self, s): self.out.append("; " + s)
    def I(self, text, tag=None, ta=16, lat=550):
        c = classify(text)
        dist = 0; pad = 0
        for p in reversed(self.hist):
            nd = need(p, c)
            if nd > dist: pad = max(pad, nd - dist)
            dist += p.states
            if dist >= 12: break
        while pad > 0:
            k = min(pad, 16)
            self._push(classify(f"s_nop {k-1}")); self.nops += 1; pad -= k
        self._push(c)
        if c.kind == "vmem":
            if self.ta_free - self.t > 480: self.t = self.ta_free - 480
            self.ta_free = max(self.ta_free, self.t) + 4 * ta
            self.vm.append(tag); self.vm_t.append(max(self.ta_free + lat, self.vm_t[-1] if self.vm_t else 0))
        if c.kind == "ds": self.lg.append(tag); self.lg_t.append(self.t + 90)
        if c.op == "s_waitcnt":
            m = re.search(r"vmcnt\((\d+)\)", text)
            if m:
                self.vm_done = max(self.vm_done, len(self.vm) - int(m.group(1)))
                if self.vm_done > 0 and self.vm_done <= len(self.vm_t): self.t = max(self.t, self.vm_t[self.vm_done - 1])
            m = re.search(r"lgkmcnt\((\d+)\)", text)
            if m:
                self.lg_done = max(self.lg_done, len(self.lg) - int(m.group(1)))
                if self.lg_done > 0 and self.lg_done <= len(self.lg_t): self.t = max(self.t, self.lg_t[self.lg_done - 1])
        if c.op.startswith("s_cmp") or c.op.startswith("s_bitcmp"): self.scc_live = 1
        elif c.op.startswith("s_cselect"): self.scc_live = 2 if self.scc_live else 0
        elif c.op.startswith("s_cbranch"): self.scc_live = 0
        elif c.kind != "salu" and self.scc_live == 2: self.scc_live = 0
        return c
    def _push(self, c):
        if c.kind == "mfma":
            self.t = max(self.t, self.mfma_free); self.mfma_free = self.t + 4 * c.passes; self.t += 8
        elif c.kind == "nop": self.t += 4 * c.states
        elif c.kind == "trans" or "permlane" in c.op: self.t += 8
        elif c.kind == "vmem": self.t += 4 if self.mfma_free > self.t else 18
        elif c.op == "s_barrier": self.t += 40
        elif c.op in ("ds_write_b128", "ds_write2st64_b64"): self.t += 32
        elif c.kind == "dot" or c.op.startswith("v_pk_"): self.t = max(self.t, self.mfma_free + 8) + 4
        else: self.t += 4
        self.out.append("    " + c.text); self.hist.append(c); self.count += 1
        if len(self.hist) > 24: self.hist.pop(0)
    def _last(self, lst, tag):
        for i in range(len(lst) - 1, -1, -1):
            if lst[i] == tag: return i
        raise KeyError(tag)
    def wait(self, vm=None, lg=None):
        parts = []
        if vm is not None:
            idx = max(self._last(self.vm, t) for t in (vm if isinstance(vm, (list, tuple)) and not isinstance(vm, str) and isinstance(vm, list) else [vm]))
            if idx >= self.vm_done:
                parts.append(f"vmcnt({min(63, len(self.vm) - 1 - idx)})")
        if lg is not None:
            idx = max(self._last(self.lg, t) for t in (lg if isinstance(lg, list) else [lg]))
            if idx >= self.lg_done:
                parts.append(f"lgkmcnt({min(15, len(self.lg) - 1 - idx)})")
        if parts: self.I("s_waitcnt " + " ".join(parts))
    def flush(self, n=12):
        self.I(f"s_nop {n-1}")
    def text(self): return "\n".join(self.out) + "\n"


import subprocess, tempfile, os
def align_pass(text, min_run=5):
    def sizes(txt):
        with tempfile.TemporaryDirectory() as d:
            p = os.path.join(d, "a.s"); open(p, "w").write(txt)
            subprocess.run(["clang", "-x", "assembler", "-target", "amdgcn-amd-amdhsa", "-mcpu=gfx950", "-c", p, "-o", p + ".o"], check=True)
            out = subprocess.run(["llvm-objdump", "-d", "--mcpu=gfx950", p + ".o"], capture_output=True, text=True).stdout
        r = []
        for l in out.split("\n"):
            m = re.search(r"//\s*([0-9A-F]{12}):\s*((?:[0-9A-F]{8}\s*)+)", l)
            if m: r.append((4 * len(m.group(2).split()), l.split()[0]))
        return r
    lines = text.split("\n")
    idx = [i for i, l in enumerate(lines) if l.startswith("    ")]
    sz = sizes(text); assert len(sz) == len(idx), (len(sz), len(idx))
    par = 0; nw = nn = 0; ins = {}
    for k, i in enumerate(idx):
        n, op = sz[k]
        if n >= 8 and par:
            run = 0
            while k + run < len(sz) and sz[k + run][0] == 8: run += 1
            pn, pop = sz[k - 1]; pl = lines[idx[k - 1]]
            ok = pn == 4 and pop.endswith("_e32") and not any(x in pop for x in ("readfirstlane", "permlane", "dot2c", "fmac", "accvgpr")) and idx[k - 1] == i - 1
            if ok:
                w = pl.split(None, 1); base = re.sub(r"_e32$", "", w[0])
                lines[idx[k - 1]] = "    " + base + "_e64 " + w[1]; par ^= 1; nw += 1
            elif run >= min_run:
                ins[i] = True; par ^= 1; nn += 1
        par ^= (n // 4) & 1
    out = []
    for i, l in enumerate(lines):
        if i in ins: out.append("    s_nop 0")
        out.append(l)
    return "\n".join(out), nw, nn
```

```python
import sys, struct, math, copy
from asmlib import Asm, align_pass, VALU_KINDS

NAME = "recurrent_scan__linear_kernel_hedgehog__mixer_s_mlp__prompt"
def f2u(x): return struct.unpack("<I", struct.pack("<f", x))[0]
def hx(x): return "0x%08x" % (x & 0xffffffff)

WS_FLAG  = 0x1000
WS_PROF  = 0x80000
WS_HS    = 0x100000
WS_X1    = 0x300000
WS_ST    = 0x4C0000
WS_CS    = 0x500000
WS_KVP   = 0x600000
WS_KVF   = 0xA00000
WS_O     = 0xB00000
WS_H3    = 0xE00000
WS_SIZE  = 0x1500000
OOB      = 0x7fffff00
NSLOT = 35
UNIT = 28672
L_PK  = NSLOT * 4096
L_R2  = L_PK + 4 * 4608
LDS_BYTES = 163840
POLL_MAX = 200000
L2E = math.log2(math.e)
ST = dict(ta=30, lat=900)

class RA:
    def __init__(self, kind, n, start=0):
        self.kind = kind; self.used = [False] * n
        for i in range(start): self.used[i] = True
        self.hi = start
    def alloc(self, n=1, align=1):
        if n >= 2: align = max(align, 2)
        for b in range(0, len(self.used) - n + 1, align):
            if not any(self.used[b:b + n]):
                for i in range(b, b + n): self.used[i] = True
                self.hi = max(self.hi, b + n)
                return b
        raise RuntimeError("out of regs " + self.kind)
    def free(self, b, n=1):
        for i in range(b, b + n):
            assert self.used[i]; self.used[i] = False

def vr(b, n=1): return f"v{b}" if n == 1 else f"v[{b}:{b+n-1}]"
def ar(b, n=1): return f"a{b}" if n == 1 else f"a[{b}:{b+n-1}]"
def sr(b, n=1): return f"s{b}" if n == 1 else f"s[{b}:{b+n-1}]"

sM, sN, sWAVE, sTH, sW2 = 3, 4, 5, 6, 7
RX, RQKV, RPHI, RWO, RW1, RW2, RW3, RW4, ROUT, RDBG, RWS = [sr(32 + 4 * i, 4) for i in range(11)]
sQUART, sOFF = 76, 77
sW1B, sW1S, sW1B2 = 78, 79, 80
sKA, sKB = 81, 82
sW2A, sW2B = 83, 84
sW3 = 85
sW4 = 86
sJ, sP, sCNT, sFLAG, sO64, sRHO = 87, 88, 89, 90, 91, 92
sR4, sR7 = 93, 31
sUP = 94
sL28 = 96
sL2E = 98
sT0, sT1, sT2, sT3 = 8, 9, 10, 11
sW3L, sW4L = 12, 13
sTT, sHD = 14, 15
sG0, sG1, sG2, sG3 = 16, 17, 18, 19
sPO = 20
sLW = 21
sM33 = 22
sPF = 100

class Gen:
    def __init__(self, prof=False, opts=None):
        self.o = opts or {}
        self.a = Asm(); self.auto = False; self.mover = None; self.backlog = self.o.get("backlog", 330)
        self.V = RA("v", 256, 1); self.A = RA("a", 256)
        self.prof = prof; self.nstamp = 0; self.stamps = []
        self.slots = [dict(free=True, done=None, priv=False) for _ in range(NSLOT)]
        self.queue = []; self.qi = 0
        self.synced_vm = 0; self.nbar = 0
        self.win = {}; self.npoll = 0; self.ool = []; self.where = {}; self.pf = []; self.pf_next = 0

    def I(self, text, tag=None, **kw):
        c = self.a.I(text, tag, **kw)
        if self.auto and c.kind in VALU_KINDS and not self.a.scc_live: self.tick()
        return c
    def tick(self, n=1):
        au = self.auto; self.auto = False
        if self.mover: self.mover()
        if self.pf and self.a.t >= self.pf_next and self.a.ta_free - self.a.t < self.backlog:
            R, k = self.pf.pop(0); self.pf_next = self.a.t + self.o.get("pfgap", 1500); I = self.a.I
            I(f"s_add_u32 s{sPO}, s{sLW}, {k * 33 * 128}"); I(f"s_mov_b64 exec, {sr(sM33,2)}")
            I(f"buffer_load_dword v{self.vTD}, v{self.vTCH}, {R}, s{sPO} offen", "touch", ta=66)
            I("s_mov_b64 exec, -1")
        while n > 0 and self.a.ta_free - self.a.t < self.backlog:
            if not self.can_issue() and self.qi < len(self.queue) and self.queue[self.qi]["slot"] is None:
                c = [self.slots[x]["done"] for x in self.queue[self.qi]["pool"] if self.slots[x]["priv"] and self.slots[x]["done"] is not None]
                c = [d for d in c if self.a.lg_t[d - 1] <= self.a.t]
                if c: self.a.I(f"s_waitcnt lgkmcnt({min(15, len(self.a.lg) - min(c))})")
            if not self.pump(1): break
            n -= 1
        self.auto = au
    def stamp(self, name):
        if not self.prof: return
        if self.o.get("stamps") and name not in self.o["stamps"].split(","): return
        I = self.a.I
        I(f"s_memtime {sr(sPF,2)}"); I("s_waitcnt lgkmcnt(0)")
        I(f"v_writelane_b32 v{self.vPROF}, s{sPF}, {self.nstamp}"); self.nstamp += 1; self.stamps.append(f"{name}@{self.a.t}")
        assert self.nstamp <= 28
    def srd(self, R, ptr, nbytes):
        b = int(R[2:].split(":")[0]); I = self.I
        I(f"s_mov_b64 {sr(b,2)}, {sr(ptr,2)}")
        I(f"s_mov_b32 s{b+2}, {nbytes}"); I(f"s_mov_b32 s{b+3}, 0x20000")
    def qpiece(self, tag, slot, srd, voff, sbase, imm, priv=False, sstride=None, pre=None, ta=17, pool=None):
        self.queue.append(dict(tag=tag, srd=srd, voff=voff, sbase=sbase, imm=imm, slot=slot, priv=priv, sstride=sstride, pre=pre, ta=ta, pool=pool))
    def qunit(self, tag, unit, srd, voff, sbase, step, extra=0, sstride=None, pre=None, ta=17):
        for i in range(7):
            self.qpiece(tag, unit * 7 + i, srd, voff, sbase, extra + i * step, sstride=sstride, pre=pre if i == 0 else None, ta=ta)
        return unit * UNIT
    def slot_ok(self, x):
        st = self.slots[x]
        return st["free"] or (st["priv"] and st["done"] is not None and self.a.lg_done >= st["done"])
    def can_issue(self):
        if self.qi >= len(self.queue): return False
        p = self.queue[self.qi]
        if p["slot"] is None: return any(self.slot_ok(x) for x in p["pool"])
        return self.slot_ok(p["slot"])
    def pump(self, n=1):
        I = self.a.I; k = 0
        while n > 0 and self.can_issue():
            p = self.queue[self.qi]; self.qi += 1; n -= 1; k += 1
            slot = p["slot"] if p["slot"] is not None else [x for x in p["pool"] if self.slot_ok(x)][0]
            self.where[p["tag"]] = slot
            if p["pre"]: p["pre"]()
            I(f"s_add_u32 m0, s{sQUART}, {slot*4096}")
            if p["sstride"] is not None:
                I(f"s_add_u32 s{p['sbase']}, s{p['sbase']}, s{p['sstride']}")
                I(f"buffer_load_dwordx4 {p['voff']}, {p['srd']}, s{p['sbase']} offen lds", p["tag"], ta=p["ta"], lat=700)
            else:
                I(f"s_add_u32 s{sPO}, s{p['sbase']}, {p['imm']}")
                I(f"buffer_load_dwordx4 {p['voff']}, {p['srd']}, s{sPO} offen lds", p["tag"], ta=p["ta"], lat=700)
            self.slots[slot] = dict(free=False, done=None, priv=p["priv"])
        return k
    def release_slots(self, slots):
        for s in slots: self.slots[s]["done"] = len(self.a.lg)
    def release(self, *unit_addrs):
        for u in unit_addrs: self.release_slots(range(u // 4096, u // 4096 + 7))
    def bar(self):
        self.I("s_barrier"); self.nbar += 1
        self.synced_vm = self.a.vm_done
        for st in self.slots:
            if not st["free"] and st["done"] is not None and self.a.lg_done >= st["done"]: st["free"] = True
    def issued(self, tag):
        return not any(p["tag"] == tag for p in self.queue[self.qi:])
    def force(self, tag):
        while not self.issued(tag):
            assert self.can_issue(), f"cannot issue pieces for {tag}"
            self.pump()
    def need(self, tags, priv=False):
        if not isinstance(tags, list): tags = [tags]
        for t in tags: self.force(t)
        if priv:
            self.a.wait(vm=tags); return
        if all(self.a._last(self.a.vm, t) < self.synced_vm for t in tags): return
        self.a.wait(vm=tags); self.bar()
    def laddr(self, pat, off):
        w = off >> 16
        if w == 0: return vr(pat), off
        if (pat, w) not in self.win:
            r = self.V.alloc(); self.win[(pat, w)] = r
            self.a.I(f"v_add_u32 v{r}, {w << 16}, v{pat}")
        return vr(self.win[(pat, w)]), off & 0xffff
    def prewin(self, pat, ws=(1, 2)):
        for w in ws: self.laddr(pat, w << 16)
    def drop_pat(self, pat):
        for k in [k for k in self.win if k[0] == pat]: self.V.free(self.win.pop(k))
        self.V.free(pat)
    def tr(self, dst, pat, off, tag):
        v, o = self.laddr(pat, off)
        self.I(f"ds_read_b64_tr_b16 {dst}, {v} offset:{o}", tag)
    def afrag(self, base, pat, off0, off1, tag, pat1=None, f=vr):
        self.tr(f(base, 2), pat, off0, tag); self.tr(f(base + 2, 2), pat if pat1 is None else pat1, off1, tag)
    def mfma(self, d, x, y, first):
        c = "0" if first else vr(d, 16)
        self.I(f"v_mfma_f32_32x32x16_bf16 {vr(d,16)}, {x}, {y}, {c}")
    def flag_store(self, stage):
        I = self.I
        I(f"s_add_u32 s{sOFF}, s{sFLAG}, {stage * 0x8000}")
        I(f"buffer_store_dword v{self.vTOK}, v{self.vFOFF}, {RWS}, s{sOFF} offen sc1", "flag", ta=4)
    def publish(self, stage, tag):
        self.a.wait(vm=tag); self.bar(); self.flag_store(stage)
    def poll_issue(self, vaddr, soff=0):
        k = self.npoll; self.npoll += 1
        t = self.V.alloc()
        self.I(f"s_mov_b32 s{sOFF}, {soff}")
        self.I(f"buffer_load_dword v{t}, v{vaddr}, {RWS}, s{sOFF} offen sc1", ("poll", k), ta=16, lat=700)
        return (k, t, vaddr, soff)
    def poll_check(self, h):
        k, t, vaddr, soff = h; I = self.I
        self.a.wait(vm=("poll", k))
        I(f"v_cmp_eq_u32 vcc, v{t}, v{self.vTOK}")
        I("s_cmp_eq_u64 vcc, -1")
        I(f"s_cbranch_scc0 L_spin{k}")
        self.a.label(f"L_pok{k}")
        self.ool.append(h)
        self.V.free(t)
    def poll(self, vaddr, soff=0): self.poll_check(self.poll_issue(vaddr, soff))
    def emit_spins(self):
        I = self.I
        for k, t, vaddr, soff in self.ool:
            self.a.label(f"L_spin{k}")
            I(f"s_mov_b32 s{sCNT}, {POLL_MAX}"); I(f"s_mov_b32 s{sOFF}, {soff}")
            self.a.label(f"L_spinl{k}")
            I(f"buffer_load_dword v{t}, v{vaddr}, {RWS}, s{sOFF} offen sc1")
            I(f"s_sub_u32 s{sCNT}, s{sCNT}, 1"); I("s_cbranch_scc1 L_abort")
            I("s_waitcnt vmcnt(0)")
            I(f"v_cmp_eq_u32 vcc, v{t}, v{self.vTOK}")
            I("s_cmp_eq_u64 vcc, -1")
            I(f"s_cbranch_scc0 L_spinl{k}")
            I(f"s_branch L_pok{k}")
        self.ool = []

    def gelu_tile(self, acc, K0, K1, out, after=None):
        I = self.I; V = self.V
        T = [V.alloc(2) for _ in range(2)]
        for p0 in range(0, 8, 2):
            prs = [p0, p0 + 1]
            U = [acc + 2 * p for p in prs]
            for k in range(2): I(f"v_pk_mul_f32 {vr(T[k],2)}, {vr(U[k],2)}, {vr(U[k],2)}")
            for k in range(2): I(f"v_pk_fma_f32 {vr(T[k],2)}, {vr(T[k],2)}, {vr(K0,2)}, {vr(K0,2)} op_sel:[0,1,0] op_sel_hi:[1,1,0]")
            for k in range(2): I(f"v_pk_mul_f32 {vr(T[k],2)}, {vr(T[k],2)}, {vr(U[k],2)}")
            for k in range(2):
                I(f"v_exp_f32 v{T[k]}, v{T[k]}"); I(f"v_exp_f32 v{T[k]+1}, v{T[k]+1}")
            for k in range(2): I(f"v_pk_fma_f32 {vr(T[k],2)}, {vr(T[k],2)}, {vr(K1,2)}, {vr(K1,2)} op_sel_hi:[1,0,0]")
            for k in range(2):
                I(f"v_rcp_f32 v{T[k]}, v{T[k]}"); I(f"v_rcp_f32 v{T[k]+1}, v{T[k]+1}")
            for k in range(2): I(f"v_pk_mul_f32 {vr(T[k],2)}, {vr(T[k],2)}, {vr(U[k],2)}")
            for k, p in enumerate(prs): I(f"v_cvt_pk_bf16_f32 v{out+p}, v{T[k]}, v{T[k]+1}")
            if after and p0 in (2, 6): after(p0 // 4)
        for t in T: V.free(t, 2)

    def gelu_consts(self, r, K0, K1):
        I = self.I
        c0 = -2.0 * math.sqrt(2.0 / math.pi) * L2E; c1 = c0 * 0.044715
        I(f"v_rcp_f32 v{K1}, v{r}")
        I(f"v_mul_f32 v{K0}, {hx(f2u(c0))}, v{r}")
        I(f"v_mul_f32 v{K0+1}, v{r}, v{r}")
        I(f"v_mul_f32 v{K0+1}, v{K0+1}, v{r}")
        I(f"v_mul_f32 v{K0+1}, {hx(f2u(c1))}, v{K0+1}")

    def feature_map(self, acc, out):
        I = self.I; V = self.V
        pk = V.alloc(8, 4)
        for p in range(8): I(f"v_cvt_pk_bf16_f32 v{pk+p}, v{acc+2*p}, v{acc+2*p+1}")
        I(f"v_and_b32 v{pk+6}, v{pk+6}, v{self.vMLO}"); I(f"v_and_b32 v{pk+7}, v{pk+7}, v{self.vMLO}")
        self.mfma(acc, ar(self.aPHI, 4), vr(pk, 4), True)
        self.tick()
        self.mfma(acc, ar(self.aPHI + 4, 4), vr(pk + 4, 4), False)
        V.free(pk, 8)
        self.tick(2)
        mm = V.alloc(2); mx, mn = mm, mm + 1
        I(f"v_max3_f32 v{mx}, v{acc}, v{acc+1}, v{acc+2}")
        I(f"v_max3_f32 v{mn}, -v{acc}, -v{acc+1}, -v{acc+2}")
        for k in range(3, 15, 2):
            I(f"v_max3_f32 v{mx}, v{mx}, v{acc+k}, v{acc+k+1}")
            I(f"v_max3_f32 v{mn}, v{mn}, -v{acc+k}, -v{acc+k+1}")
        I(f"v_max_f32_e64 v{mx}, v{mx}, v{acc+15}")
        I(f"v_max_f32_e64 v{mn}, v{mn}, -v{acc+15}")
        I(f"v_permlane32_swap_b32 v{mx}, v{mn}")
        I(f"v_max_f32 v{mx}, v{mx}, v{mn}")
        I(f"v_mul_f32 v{mx}, {hx(f2u(-L2E))}, v{mx}")
        I(f"v_mov_b32 v{mn}, v{mx}")
        I(f"v_permlane32_swap_b32 v{mx}, v{mn}")
        neg = V.alloc(16, 2)
        for p in range(8):
            I(f"v_pk_fma_f32 {vr(neg+2*p,2)}, {vr(acc+2*p,2)}, {sr(sL2E,2)}, {vr(mm,2)} op_sel:[0,0,1] op_sel_hi:[1,0,1] neg_lo:[1,0,0] neg_hi:[1,0,0]")
            I(f"v_pk_fma_f32 {vr(acc+2*p,2)}, {vr(acc+2*p,2)}, {sr(sL2E,2)}, {vr(mm,2)} op_sel_hi:[1,0,0]")
        for k in range(16):
            I(f"v_exp_f32 v{acc+k}, v{acc+k}"); I(f"v_exp_f32 v{neg+k}, v{neg+k}")
        S = [V.alloc(2), V.alloc(2)]; H = [V.alloc(2), V.alloc(2)]
        for s, b in enumerate((acc, neg)): I(f"v_pk_add_f32 {vr(S[s],2)}, {vr(b,2)}, {vr(b+2,2)}")
        for s, b in enumerate((acc, neg)): I(f"v_pk_add_f32 {vr(H[s],2)}, {vr(b+12,2)}, {vr(b+14,2)}")
        for k in range(4, 12, 2):
            for s, b in enumerate((acc, neg)): I(f"v_pk_add_f32 {vr(S[s],2)}, {vr(S[s],2)}, {vr(b+k,2)}")
        for s in range(2): I(f"v_pk_fma_f32 {vr(S[s],2)}, {vr(H[s],2)}, {vr(self.vFM,2)}, {vr(S[s],2)} op_sel_hi:[1,0,1]")
        for s in range(2): I(f"v_add_f32 v{S[s]}, v{S[s]}, v{S[s]+1}")
        I(f"v_permlane32_swap_b32 v{S[0]}, v{S[1]}")
        I(f"v_add_f32 v{S[0]}, v{S[0]}, v{S[1]}")
        I(f"v_rcp_f32 v{S[0]}, v{S[0]}")
        I(f"v_mov_b32 v{S[1]}, v{S[0]}")
        I(f"v_permlane32_swap_b32 v{S[0]}, v{S[1]}")
        for s in range(2): I(f"v_mul_f32 v{S[s]+1}, v{S[s]}, v{self.vFM}")
        for s, b in enumerate((acc, neg)):
            for p in range(8):
                sel = "op_sel:[0,1] op_sel_hi:[1,1]" if p >= 6 else "op_sel_hi:[1,0]"
                I(f"v_pk_mul_f32 {vr(b+2*p,2)}, {vr(b+2*p,2)}, {vr(S[s],2)} {sel}")
            for p in range(8): I(f"v_cvt_pk_bf16_f32 v{out+8*s+p}, v{b+2*p}, v{b+2*p+1}")
        for x in S + H: V.free(x, 2)
        V.free(neg, 16); V.free(mm, 2)

    def loop1(self, name, units, pat, acc, swap=False, bfrag=None, pre=None, hooks=None, D=3):
        ring = self.vRING; hooks = hooks or {}; au = self.auto; self.auto = False
        def rd(s):
            u = s // 14
            if s % 14 == 0: self.need(f"{name}{u}")
            base = units[u] + (s % 14) * 2048
            if pre: pre(s)
            self.afrag(ring + 4 * (s % (D + 1)), pat, base, base + 1024, (name, s))
            if s % 14 == 13: self.release(units[u])
        for s in range(D): rd(s)
        for s in range(28):
            self.a.wait(lg=(name, s))
            A = vr(ring + 4 * (s % (D + 1)), 4); B = bfrag(s) if bfrag else ar(self.aX + 4 * s, 4)
            if swap: self.mfma(acc, B, A, s == 0)
            else: self.mfma(acc, A, B, s == 0)
            if s + D < 28: rd(s + D)
            if s in hooks: hooks[s]()
            else: self.tick()
        self.auto = au

    def build(self):
        a = self.a; I = self.I; V = self.V; A = self.A; o = self.o
        a.raw(f"; @launch grid=(256,1,1) block=(256,1,1) lds={LDS_BYTES}")
        a.raw('.amdgcn_target "amdgcn-amd-amdhsa--gfx950"')
        a.raw(".text"); a.raw(f".globl {NAME}_kernel"); a.raw(".p2align 8"); a.raw(f".type {NAME}_kernel,@function")
        a.label(f"{NAME}_kernel")
        I("s_cmp_ge_u32 s2, 256"); I("s_cbranch_scc1 L_end")
        I("s_load_dwordx8 s[8:15], s[0:1], 0")
        I("s_load_dwordx8 s[16:23], s[0:1], 40")
        I("s_load_dwordx4 s[24:27], s[0:1], 72")
        I("s_load_dwordx2 s[28:29], s[0:1], 88")
        if self.prof:
            self.vPROF = V.alloc()
            I(f"s_memrealtime {sr(sPF,2)}"); I(f"s_memtime {sr(sL2E,2)}")
        vL = V.alloc(); t0 = V.alloc(); t1 = V.alloc(); t2 = V.alloc(); t3 = V.alloc()
        I(f"v_lshrrev_b32 v{t0}, 6, v0"); I(f"v_and_b32 v{vL}, 63, v0")
        I(f"v_readfirstlane_b32 s{sWAVE}, v{t0}")
        I(f"s_and_b32 s{sM}, s2, 7"); I(f"s_lshl_b32 s{sM}, s{sM}, 2"); I(f"s_lshr_b32 s{sN}, s2, 6"); I(f"s_add_u32 s{sM}, s{sM}, s{sN}")
        I(f"s_bfe_u32 s{sN}, s2, 0x30003")
        I(f"s_xor_b32 s{sRHO}, s{sM}, s{sN}"); I(f"s_and_b32 s{sRHO}, s{sRHO}, {1 if o.get('rot',1) else 0}")
        vXO = V.alloc()
        I(f"v_lshrrev_b32 v{t0}, 2, v{vL}"); I(f"v_mul_u32_u24 v{vXO}, 896, v{t0}")
        I(f"v_and_b32 v{t1}, 3, v{vL}"); I(f"v_lshl_add_u32 v{vXO}, v{t1}, 4, v{vXO}")
        I(f"s_lshl_b32 s30, s{sM}, 2"); I(f"s_add_u32 s30, s30, s{sWAVE}"); I(f"s_mul_i32 s30, s30, {16*896}")
        I(f"s_mul_i32 s31, s{sRHO}, 448"); I(f"s_add_u32 s{sOFF}, s30, s31"); I("s_add_u32 s30, s30, 448"); I("s_sub_u32 s30, s30, s31")
        I(f"s_and_b32 s{sTH}, s{sWAVE}, 1"); I(f"s_lshr_b32 s{sW2}, s{sWAVE}, 1")
        I(f"s_lshl_b32 s{sQUART}, s{sWAVE}, 10")
        self.vZ = vZ = V.alloc(); I(f"v_mov_b32 v{vZ}, 0")
        self.vTCH = vTCH = V.alloc(); self.vTD = vTD = V.alloc()
        I(f"v_lshlrev_b32 v{vTCH}, 7, v{vL}")
        I(f"s_lshl_b32 s{sCNT}, s2, 2"); I(f"s_add_u32 s{sCNT}, s{sCNT}, s{sWAVE}")
        I("s_mov_b32 s34, %d" % (2048 * 896)); I("s_mov_b32 s35, 0x20000")
        I("s_waitcnt lgkmcnt(0)")
        if self.prof:
            I(f"v_writelane_b32 v{self.vPROF}, s{sPF}, 30"); I(f"v_writelane_b32 v{self.vPROF}, s{sL2E}, 28")
        I("s_mov_b64 s[32:33], s[8:9]")
        def touch(R, mul, sh, lanes):
            I(f"s_mul_i32 s{sFLAG}, s{sCNT}, {mul}"); I(f"s_lshr_b32 s{sFLAG}, s{sFLAG}, {sh}"); I(f"s_lshl_b32 s{sFLAG}, s{sFLAG}, 7")
            I(f"s_mov_b64 exec, {(1 << lanes) - 1}")
            for r in R: I(f"buffer_load_dword v{vTD}, v{vTCH}, {r}, s{sFLAG} offen", "touch", ta=2*lanes)
            I("s_mov_b64 exec, -1")
        vX = V.alloc(56, 4)
        def xload(i): I(f"buffer_load_dwordx4 {vr(vX+4*i,4)}, v{vXO}, {RX}, s{sOFF if i < 7 else 30} offen offset:{64*(i%7)}", ("x", i))
        for i in range(4): xload(i)
        self.srd(RQKV, 10, 448 * 2688); self.srd(RW1, 16, 448 * 896)
        touch([RW1], 49, 4, 4); touch([RQKV], 147, 4, 10)
        for i in range(4, 7): xload(i)
        self.srd(RWS, 28, WS_SIZE)
        vEP = V.alloc(2)
        I(f"buffer_load_dword v{vEP}, v{vZ}, {RWS}, 0 offen sc1", "epoch")
        self.srd(RPHI, 12, 25088); self.srd(RWO, 14, 448 * 896)
        self.srd(RW2, 18, 448 * 896); self.srd(RW3, 20, 448 * 3584); self.srd(RW4, 22, 1792 * 896)
        self.srd(ROUT, 24, 2048 * 896); self.srd(RDBG, 26, 256)
        I(f"s_cmp_eq_u32 s{sN}, 7")
        I("s_cselect_b32 s48, s20, s16"); I("s_cselect_b32 s49, s21, s17")
        I(f"s_cselect_b32 s50, {448*3584}, s50")
        I(f"s_cselect_b32 s{sT0}, s{sM}, s{sN}")
        I(f"s_mov_b32 s{sT1}, 896"); I(f"s_cselect_b32 s{sT1}, 3584, s{sT1}")
        I(f"s_lshl_b32 s{sW1S}, s{sT1}, 5")
        I(f"s_mul_i32 s{sW1B}, s{sT1}, s{sWAVE}"); I(f"s_lshl_b32 s{sW1B}, s{sW1B}, 3")
        I(f"s_lshl_b32 s{sT0}, s{sT0}, 7"); I(f"s_add_u32 s{sW1B}, s{sW1B}, s{sT0}"); I(f"s_sub_u32 s{sW1B}, s{sW1B}, s{sW1S}")
        I(f"s_mul_i32 s{sT2}, s{sW1S}, 7"); I(f"s_mul_i32 s{sT3}, s{sT2}, s{sRHO}")
        I(f"s_add_u32 s{sW1B2}, s{sW1B}, s{sT2}"); I(f"s_sub_u32 s{sW1B2}, s{sW1B2}, s{sT3}"); I(f"s_add_u32 s{sW1B}, s{sW1B}, s{sT3}")
        vD1 = V.alloc(); vD896 = V.alloc(); vDQ = V.alloc(); vD3 = V.alloc(); vL16 = V.alloc()
        I(f"v_lshlrev_b32 v{vL16}, 4, v{vL}")
        I(f"v_lshrrev_b32 v{t0}, 3, v{vL}")
        I(f"v_lshrrev_b32 v{t1}, 2, v{vL}"); I(f"v_and_b32 v{t1}, 4, v{t1}")
        I(f"v_and_b32 v{t2}, 7, v{vL}"); I(f"v_xor_b32 v{t2}, v{t2}, v{t1}")
        I(f"v_lshlrev_b32 v{t3}, 4, v{t2}")
        I(f"v_mad_u32_u24 v{vD1}, v{t0}, s{sT1}, v{t3}")
        I(f"v_mul_u32_u24 v{vD896}, 896, v{t0}"); I(f"v_add_u32 v{vD896}, v{vD896}, v{t3}")
        I(f"s_mul_i32 s{sT0}, s{sN}, 112")
        I(f"s_mul_i32 s{sKA}, s{sWAVE}, {8*2688}"); I(f"s_add_u32 s{sKA}, s{sKA}, s{sT0}")
        I(f"s_mul_i32 s{sT3}, s{sRHO}, {224*2688}")
        I(f"s_add_u32 s{sKB}, s{sKA}, {224*2688}"); I(f"s_sub_u32 s{sKB}, s{sKB}, s{sT3}"); I(f"s_add_u32 s{sKA}, s{sKA}, s{sT3}")
        I(f"v_cmp_eq_u32 vcc, 7, v{t2}")
        I(f"v_mul_u32_u24 v{vDQ}, 2688, v{t0}"); I(f"v_add_u32 v{vDQ}, v{vDQ}, v{t3}"); I(f"v_mov_b32 v{t1}, {hx(OOB)}")
        I(f"v_cndmask_b32 v{vDQ}, v{vDQ}, v{t1}, vcc")
        for i in range(7, 14): xload(i)
        V.free(vXO)
        I(f"s_add_u32 m0, s{sQUART}, {L_PK}")
        I(f"s_mul_i32 s{sT0}, s{sN}, 3136"); I(f"s_add_u32 s{sT0}, s{sT0}, s{sQUART}")
        I(f"buffer_load_dwordx4 v{vL16}, {RPHI}, s{sT0} offen lds", "phi")
        I(f"s_lshl_b32 s{sT0}, s{sN}, 7")
        I(f"s_mul_i32 s{sW2A}, s{sWAVE}, {8*896}"); I(f"s_add_u32 s{sW2A}, s{sW2A}, s{sT0}")
        I(f"s_mul_i32 s{sT3}, s{sRHO}, {224*896}")
        I(f"s_add_u32 s{sW2B}, s{sW2A}, {224*896}"); I(f"s_sub_u32 s{sW2B}, s{sW2B}, s{sT3}"); I(f"s_add_u32 s{sW2A}, s{sW2A}, s{sT3}")
        I(f"s_lshr_b32 s{sP}, s{sM}, 1"); I(f"s_and_b32 s{sJ}, s{sM}, 1"); I(f"s_mul_i32 s{sJ}, s{sJ}, 7"); I(f"s_add_u32 s{sJ}, s{sJ}, s{sN}")
        I(f"s_lshl_b32 s{sR4}, s{sP}, 1"); I(f"s_add_u32 s{sR4}, s{sR4}, s{sJ}"); I(f"s_and_b32 s{sR4}, s{sR4}, {3 if o.get('rot',1) else 0}")
        I(f"s_and_b32 s{sR7}, s{sM}, 3"); I(f"s_lshl_b32 s{sR7}, s{sR7}, 1"); I(f"s_add_u32 s{sR7}, s{sR7}, s{sN}")
        I(f"s_cmp_ge_u32 s{sR7}, 7"); I(f"s_cselect_b32 s{sT1}, 7, 0"); I(f"s_sub_u32 s{sR7}, s{sR7}, s{sT1}")
        if not o.get('rot', 1): I(f"s_mov_b32 s{sR7}, 0")
        G4 = 64 * 896; G3 = 112 * 3584
        I(f"s_mul_i32 s{sW4}, s{sWAVE}, {448*896}"); I(f"s_add_u32 s{sW4}, s{sW4}, s{sT0}"); I(f"s_add_u32 s{sW4L}, s{sW4}, {7*G4}")
        I(f"s_mul_i32 s{sT1}, s{sR7}, {G4}"); I(f"s_add_u32 s{sW4}, s{sW4}, s{sT1}")
        I(f"s_lshl_b32 s{sT0}, s{sJ}, 8"); I(f"s_mul_i32 s{sW3}, s{sWAVE}, {4*3584}"); I(f"s_add_u32 s{sW3}, s{sW3}, s{sT0}"); I(f"s_add_u32 s{sW3L}, s{sW3}, {4*G3}")
        I(f"s_mul_i32 s{sT1}, s{sR4}, {G3}"); I(f"s_add_u32 s{sW3}, s{sW3}, s{sT1}")
        I(f"s_lshl_b32 s{sTT}, s{sM}, 1"); I(f"s_add_u32 s{sTT}, s{sTT}, s{sTH}")
        I(f"s_lshl_b32 s{sHD}, s{sN}, 1"); I(f"s_add_u32 s{sHD}, s{sHD}, s{sW2}")
        I(f"v_lshrrev_b32 v{t0}, 4, v{vL}"); I(f"v_lshlrev_b32 v{t1}, 2, v{t0}")
        I(f"v_and_b32 v{t2}, 15, v{vL}"); I(f"v_xor_b32 v{t2}, v{t2}, v{t1}"); I(f"v_lshlrev_b32 v{t2}, 4, v{t2}")
        I(f"v_mul_u32_u24 v{vD3}, 3584, v{t0}"); I(f"v_add_u32 v{vD3}, v{vD3}, v{t2}")
        def adv(s, lim, g, n):
            def f():
                I(f"s_add_u32 s{s}, s{s}, {g}"); I(f"s_cmp_eq_u32 s{s}, s{lim}"); I(f"s_cselect_b32 s{sPO}, {n*g}, 0"); I(f"s_sub_u32 s{s}, s{s}, s{sPO}")
            return f
        for s_ in range(14): self.slots[s_] = dict(free=False, done=None, priv=False)
        XN = [0, UNIT]
        W1 = [self.qunit("w10", 2, RW1, vr(vD1), sW1B, 0, sstride=sW1S), self.qunit("w11", 3, RW1, vr(vD1), sW1B2, 0, sstride=sW1S)]
        qs = 32 * 2688
        QT = 33
        WK = [self.qunit("wk0", 4, RQKV, vr(vDQ), sKA, qs, 896, ta=QT), self.qunit("wk1", 2, RQKV, vr(vDQ), sKB, qs, 896, ta=QT)]
        WV = [self.qunit("wv0", 0, RQKV, vr(vDQ), sKA, qs, 1792, ta=QT), self.qunit("wv1", 1, RQKV, vr(vDQ), sKB, qs, 1792, ta=QT)]
        W2 = [self.qunit("w20", 3, RW2, vr(vD896), sW2A, 32 * 896), self.qunit("w21", 4, RW2, vr(vD896), sW2B, 32 * 896)]
        WQ = [self.qunit("wq0", 2, RQKV, vr(vDQ), sKA, qs, ta=QT), self.qunit("wq1", 0, RQKV, vr(vDQ), sKB, qs, ta=QT)]
        W3 = [self.qunit(f"w3{u}", un, RW3, vr(vD3), sW3, 16 * 3584, pre=adv(sW3, sW3L, G3, 4) if u else None) for u, un in enumerate((1, 3, 4, 2))]
        pool4 = list(range(0, 14)) + list(range(21, 28))
        NREG = 18
        for i in range(56):
            self.qpiece(("w4", i), None, RW4, vr(vD896), sW4, (i % 8) * 8 * 896, priv=True, pool=pool4, pre=adv(sW4, sW4L, G4, 7) if (i % 8 == 0 and i) else None)
        WO = [self.qunit("wo0", 4, RWO, vr(vD896), sW2A, 32 * 896), self.qunit("wo1", 2, RWO, vr(vD896), sW2B, 32 * 896)]
        I(f"s_lshr_b32 s{sLW}, s2, 3"); I(f"s_lshl_b32 s{sLW}, s{sLW}, 2"); I(f"s_add_u32 s{sLW}, s{sLW}, s{sWAVE}"); I(f"s_mul_i32 s{sLW}, s{sLW}, {98*128}")
        I(f"s_mov_b32 s{sM33}, -1"); I(f"s_mov_b32 s{sM33+1}, 1")
        self.vTOK = V.alloc(); self.vFOFF = V.alloc(); self.vFM = V.alloc(2); self.vMLO = V.alloc()
        I(f"s_mov_b32 s{sUP}, 0"); I(f"s_mov_b32 s{sUP+1}, -1")
        I(f"s_mov_b32 s{sL28}, 0x10000000"); I(f"s_mov_b32 s{sL28+1}, 0x10000000")
        I(f"s_mov_b32 s{sL2E}, {hx(f2u(L2E))}"); I(f"s_mov_b32 s{sL2E+1}, s{sL2E}")
        I(f"v_cndmask_b32 v{self.vFM}, 1.0, 0, {sr(sUP,2)}"); I(f"v_cndmask_b32 v{self.vMLO}, -1, 0, {sr(sUP,2)}")
        I(f"v_mov_b32 v{self.vFM+1}, 0")
        I(f"v_mov_b32 v{t0}, {hx(OOB)}"); I(f"v_cmp_eq_u32 vcc, 0, v0"); I(f"v_cndmask_b32 v{self.vFOFF}, v{t0}, v{vZ}, vcc")
        vPW = V.alloc(); vPW2 = V.alloc(); vPQ = V.alloc(); vRC = V.alloc(); vROW = V.alloc(); vT31 = V.alloc()
        I(f"v_and_b32 v{vT31}, 31, v{vL}")
        I(f"v_bfe_u32 v{t0}, v{vL}, 2, 2")
        I(f"v_lshrrev_b32 v{t1}, 5, v{vL}"); I(f"v_lshl_add_u32 v{vROW}, v{t1}, 2, v{t0}")
        I(f"v_and_b32 v{t2}, 3, v{vL}"); I(f"v_lshlrev_b32 v{t2}, 3, v{t2}")
        I(f"v_bfe_u32 v{t3}, v{vL}, 4, 1"); I(f"v_lshl_add_u32 v{vRC}, v{t3}, 5, v{t2}")
        I(f"v_lshrrev_b32 v{t0}, 1, v{t0}"); I(f"v_lshlrev_b32 v{t0}, 6, v{t0}")
        I(f"s_lshl_b32 s{sT0}, s{sW2}, 6")
        I(f"v_add_u32 v{t1}, s{sT0}, v{vRC}"); I(f"v_xor_b32 v{t1}, v{t1}, v{t0}"); I(f"v_lshl_add_u32 v{vPW}, v{vROW}, 7, v{t1}")
        I(f"v_xor_b32 v{vPW2}, 64, v{vPW}")
        I(f"s_mul_i32 s{sT0}, s{sW2}, 56")
        I(f"v_add_u32 v{t1}, s{sT0}, v{vRC}"); I(f"v_xor_b32 v{t1}, v{t1}, v{t0}"); I(f"v_lshl_add_u32 v{vPQ}, v{vROW}, 7, v{t1}")
        self.prewin(vPW, (1,)); self.prewin(vPQ)
        vSA = V.alloc(2); vKM = V.alloc(2)
        for u in range(2):
            I(f"s_lshl_b32 s{sT0}, s{sHD}, 1"); I(f"s_add_u32 s{sT0}, s{sT0}, {u}")
            I(f"s_mul_i32 s{sT1}, s{sT0}, 37"); I(f"s_lshr_b32 s{sT1}, s{sT1}, 8")
            I(f"s_lshr_b32 s{sT2}, s{sT1}, 1"); I(f"s_add_u32 s{sT2}, s{sT2}, 1")
            I(f"s_sub_u32 s{sT3}, 0, s{sT2}"); I(f"s_bitcmp1_b32 s{sT1}, 0"); I(f"s_cselect_b32 s{sT2}, s{sT3}, s{sT2}")
            I(f"s_lshl_b32 s{sT1}, s{sTT}, 5"); I(f"s_add_u32 s{sT1}, s{sT1}, s{sT2}")
            I(f"v_add_u32 v{t0}, s{sT1}, v{vT31}")
            I(f"v_cmp_gt_u32 vcc, 0x800, v{t0}")
            I(f"v_bfe_u32 v{t3}, v{t0}, 5, 6"); I(f"v_mul_u32_u24 v{t3}, 28672, v{t3}")
            I(f"v_cndmask_b32 v{vKM+u}, 0, -1, vcc")
            I(f"v_and_b32 v{t0}, 31, v{t0}"); I(f"v_and_or_b32 v{t0}, v{vL}, 32, v{t0}"); I(f"v_lshl_add_u32 v{t3}, v{t0}, 4, v{t3}")
            I(f"s_lshl_b32 s{sT0}, s{sT0}, 10"); I(f"s_add_u32 s{sT0}, s{sT0}, {WS_HS}")
            I(f"v_add_u32 v{vSA+u}, s{sT0}, v{t3}")
        vR2W = V.alloc(); vXW = V.alloc(); vBE = V.alloc(); vBO = V.alloc()
        I(f"v_and_b32 v{t0}, 60, v{vL}"); I(f"s_lshl_b32 s{sT0}, s{sWAVE}, 6"); I(f"s_add_u32 s{sT0}, s{sT0}, {L_R2}")
        I(f"v_add_u32 v{vR2W}, s{sT0}, v{t0}")
        I(f"v_lshrrev_b32 v{t0}, 2, v{vL}"); I(f"s_lshl_b32 s{sT0}, s{sTH}, 4"); I(f"v_add_u32 v{t0}, s{sT0}, v{t0}")
        I(f"v_bfe_u32 v{t1}, v{vL}, 1, 1")
        I(f"v_lshlrev_b32 v{t2}, 2, v{t1}"); I(f"v_xor_b32 v{t0}, v{t0}, v{t2}"); I(f"v_lshlrev_b32 v{t0}, 4, v{t0}")
        I(f"v_lshl_add_u32 v{t0}, v{t1}, 10, v{t0}")
        I(f"v_and_b32 v{t1}, 1, v{vL}"); I(f"v_lshl_add_u32 v{t0}, v{t1}, 3, v{t0}")
        I(f"s_mul_i32 s{sT0}, s{sW2}, {UNIT}"); I(f"v_add_u32 v{vXW}, s{sT0}, v{t0}")
        I(f"s_mul_i32 s{sT0}, s{sTH}, {UNIT}"); I(f"v_add_u32 v{vBE}, s{sT0}, v{vL16}"); I(f"v_xor_b32 v{vBO}, 64, v{vBE}")
        vRA = V.alloc(2); vR2 = V.alloc(); vPH = V.alloc(2)
        I(f"s_mul_i32 s{sT0}, s{sRHO}, 7"); I(f"s_add_u32 s{sT0}, s{sT0}, s{sHD}")
        I(f"s_cmp_ge_u32 s{sT0}, 14"); I(f"s_cselect_b32 s{sT1}, 14, 0"); I(f"s_sub_u32 s{sT0}, s{sT0}, s{sT1}"); I(f"s_lshl_b32 s{sT0}, s{sT0}, 11")
        I(f"v_add_u32 v{vRA}, s{sT0}, v{vBE}"); I(f"v_add_u32 v{vRA+1}, s{sT0}, v{vBO}")
        I(f"s_lshl_b32 s{sT0}, s{sTH}, 7"); I(f"s_add_u32 s{sT0}, s{sT0}, {L_R2}")
        I(f"v_lshl_add_u32 v{vR2}, v{vT31}, 2, s{sT0}")
        I(f"v_min_u32 v{t0}, 48, v{vRC}")
        I(f"s_mul_i32 s{sT0}, s{sW2}, 1568"); I(f"s_add_u32 s{sT0}, s{sT0}, {L_PK}")
        I(f"v_add_u32 v{t0}, s{sT0}, v{t0}")
        I(f"v_and_b32 v{t1}, 3, v{vROW}"); I(f"v_mul_u32_u24 v{t1}, 56, v{t1}"); I(f"v_add_u32 v{vPH+1}, v{t1}, v{t0}")
        I(f"v_mul_u32_u24 v{t2}, 56, v{vROW}"); I(f"v_add_u32 v{vPH}, v{t2}, v{t0}")
        st = V.alloc(4, 2)
        for k in range(4): I(f"v_mov_b32 v{st+k}, 0")
        vONE = V.alloc(4, 4)
        for k in range(4): I(f"v_mov_b32 v{vONE+k}, 0x3f803f80")
        self.stamp("pro")
        for i in range(14):
            a.wait(vm=("x", i))
            for k in range(4):
                d = vX + 4 * i + k; oo = 2 * (k & 1)
                I(f"v_dot2c_f32_bf16 v{st+oo}, v{d}, v{vONE}")
                I(f"v_dot2c_f32_bf16 v{st+oo+1}, v{d}, v{d}")
            if i == 7:
                I(f"s_mov_b32 s{sT1}, 1664525")
                I(f"v_mul_lo_u32 v{vEP}, v{vEP}, s{sT1}"); I(f"v_add_u32 v{vEP}, 1013904223, v{vEP}"); I(f"v_mov_b32 v{vEP+1}, 1")
                I(f"s_cmp_eq_u32 s2, 0"); I(f"s_cselect_b32 s{sT0}, 0, {hx(0x7f000000)}")
                I(f"buffer_store_dwordx2 {vr(vEP,2)}, v{self.vFOFF}, {RDBG}, s{sT0} offen sc1", "tokst", ta=4)
                I(f"buffer_store_dword v{vEP}, v{self.vFOFF}, {RWS}, s{sT0} offen sc1", "tokst", ta=4)
            self.pump(1)
        I(f"v_pk_add_f32 {vr(st,2)}, {vr(st,2)}, {vr(st+2,2)}")
        for qp in ("[1,0,3,2]", "[2,3,0,1]"):
            for k in range(2): I(f"v_add_f32_dpp v{st+k}, v{st+k}, v{st+k} quad_perm:{qp} row_mask:0xf bank_mask:0xf")
        I(f"v_mul_f32 v{st}, {hx(f2u(1/448))}, v{st}")
        I(f"v_mul_f32 v{st+1}, {hx(f2u(1/448))}, v{st+1}")
        I(f"v_fma_f32 v{st+1}, -v{st}, v{st}, v{st+1}")
        I(f"v_max_f32 v{st+1}, 0, v{st+1}")
        I(f"v_add_f32 v{st+2}, {hx(f2u(1e-5))}, v{st+1}")
        I(f"v_rsq_f32 v{st+2}, v{st+2}")
        tp = [V.alloc(2), V.alloc(2)]
        I(f"v_mul_f32_e64 v{st+3}, -v{st}, v{st+2}")
        self.stamp("stats")
        self.auto = bool(o.get("autonorm", 1))
        for i in range(14):
            for k0 in (0, 2):
                for k in range(2): I(f"v_lshlrev_b32 v{tp[k]}, 16, v{vX+4*i+k0+k}")
                for k in range(2): I(f"v_and_b32 v{tp[k]+1}, 0xffff0000, v{vX+4*i+k0+k}")
                for k in range(2):
                    I(f"v_pk_fma_f32 {vr(tp[k],2)}, {vr(tp[k],2)}, {vr(st+2,2)}, {vr(st+2,2)} op_sel:[0,0,1] op_sel_hi:[1,0,1]")
                for k in range(2): I(f"v_cvt_pk_bf16_f32 v{vX+4*i+k0+k}, v{tp[k]}, v{tp[k]+1}")
            I(f"ds_write2st64_b64 v{vXW}, {vr(vX+4*i,2)}, {vr(vX+4*i+2,2)} offset0:{4*i} offset1:{4*i+1}", "xnw")
        I(f"v_mul_f32 v{st+1}, v{st+1}, v{st+2}"); I(f"v_mul_f32 v{st+1}, v{st+1}, v{st+2}")
        I(f"v_add_f32 v{st+1}, {hx(f2u(1e-5))}, v{st+1}")
        I(f"v_rsq_f32 v{st+1}, v{st+1}")
        I("s_nop 0")
        I(f"ds_write_b32 v{vR2W}, v{st+1}", "xnw")
        for x in tp: V.free(x, 2)
        V.free(st, 4); V.free(vR2W); V.free(vXW)
        self.stamp("norm0")
        self.auto = True
        a.wait(lg="xnw", vm=["w11", "phi"]); self.bar()
        V.free(vX, 56); V.free(vEP, 2)
        self.stamp("norm")
        self.aX = aX = 0; self.aPHI = 112; aH = 144; aW4 = 0; aB = 144
        self.vRING = R = V.alloc(32, 4)
        vRES = V.alloc(8, 4); acc = V.alloc(16, 4); vTK2 = V.alloc(2)
        K0 = V.alloc(2); K1 = V.alloc(2); outp = V.alloc(8, 4)
        def xpre(s): I(f"ds_read_b128 {ar(aX+4*s,4)}, v{vBO if s & 1 else vBE} offset:{s*1024}", ("w1", s))
        def h_misc():
            I(f"ds_read_b128 {vr(vRES,4)}, v{vRA}", "res"); I(f"ds_read_b128 {vr(vRES+4,4)}, v{vRA+1} offset:1024", "res")
            I(f"ds_read_b32 v{vR2}, v{vR2}", "res")
        def h_phi():
            self.afrag(self.aPHI, vPH, 0, 8 * 56, "res", f=ar); self.afrag(self.aPHI + 4, vPH, 16 * 56, 24 * 56, "res", pat1=vPH + 1, f=ar)
        def h_tok(): I(f"buffer_load_dwordx2 {vr(vTK2,2)}, v{vZ}, {RDBG}, 0 offen sc1", "tok", ta=4)
        def h_touch2():
            touch([RW2, RWO], 49, 4, 4); touch([RW3, RW4], 49, 2, 13)
            I(f"s_lshl_b32 s{sFLAG}, s{sM}, 3"); I(f"s_add_u32 s{sFLAG}, s{sFLAG}, s{sN}"); I(f"s_lshl_b32 s{sFLAG}, s{sFLAG}, 7"); I(f"s_add_u32 s{sFLAG}, s{sFLAG}, {WS_FLAG}")
        hk1 = {14: self.bar, 25: h_misc, 26: h_phi, 24: h_tok, 27: lambda: None}
        I(f"s_cmp_eq_u32 s{sN}, 7"); I("s_cbranch_scc1 L_s1_spare")
        snap = self.snapshot()
        self.loop1("w1", W1, vPW, acc, pre=xpre, hooks=hk1)
        self.release(*XN); a.wait(lg="res"); self.bar()
        self.stamp("s1loop")
        self.gelu_consts(vR2, K0, K1)
        def hs_store(u):
            for k in range(4): I(f"v_and_b32 v{outp+4*u+k}, v{outp+4*u+k}, v{vKM+u}")
            I(f"buffer_store_dwordx4 {vr(outp+4*u,4)}, v{vSA+u}, {RWS}, 0 offen sc1", "hs", **ST)
        self.gelu_tile(acc, K0, K1, outp, after=hs_store)
        spare_out = outp
        V.free(K0, 2); V.free(K1, 2); V.free(outp, 8); V.free(vSA, 2); V.free(vKM, 2); V.free(vR2); V.free(vRA, 2); V.free(vPH, 2); V.free(vBE); V.free(vBO)
        spare1 = (snap, self.qi)
        a.label("L_s1_join")
        self.stamp("s1epi")
        if o.get("pf", 0): self.pf = [(R_, k) for R_ in (RW3, RW4) for k in range(3)]; self.pf_next = a.t + o.get("pf0", 600)
        def h_tokchk():
            a.wait(vm="tok")
            I(f"v_readfirstlane_b32 s{sT0}, v{vTK2+1}")
            I(f"s_cmp_eq_u32 s{sT0}, 0"); I("s_cbranch_scc1 L_tok_retry")
            a.label("L_tok_ok")
            I(f"v_mov_b32 v{self.vTOK}, v{vTK2}")
        vPA = V.alloc(); vPG = V.alloc(); vEW = V.alloc(); vER = V.alloc(); vER2 = V.alloc(); vKW = V.alloc(); vKR = V.alloc(2)
        def seq(lst, first, step=1, per=3):
            hk = {}
            for i in range(0, len(lst), per):
                hk[first + step * (i // per)] = (lambda ch: lambda: [I(x) for x in ch])(lst[i:i + per])
            return hk
        hk = seq([f"v_lshrrev_b32 v{t0}, 3, v{vL}", f"v_min_u32 v{t0}, 2, v{t0}", f"s_add_u32 s{sT0}, s{sM}, 31",
                  f"v_add_u32 v{t0}, s{sT0}, v{t0}", f"v_and_b32 v{t0}, 31, v{t0}", f"v_and_b32 v{t1}, 7, v{vL}",
                  f"v_min_u32 v{t1}, 6, v{t1}", f"v_lshl_add_u32 v{t0}, v{t0}, 3, v{t1}", f"v_and_b32 v{t2}, 1, v{vL}",
                  f"s_lshl_b32 s{sT0}, s{sJ}, 1", f"v_add_u32 v{t2}, s{sT0}, v{t2}", f"v_lshl_or_b32 v{t2}, v{t2}, 3, 7",
                  f"v_cndmask_b32 v{t0}, v{t0}, v{t2}, {sr(sUP,2)}", f"v_lshlrev_b32 v{vPA}, 7, v{t0}", f"v_bfe_u32 v{t0}, v{vL}, 3, 1",
                  f"s_lshl_b32 s{sT0}, s{sP}, 1", f"v_add_u32 v{t0}, s{sT0}, v{t0}", f"v_lshl_add_u32 v{t0}, v{t0}, 3, v{t1}",
                  f"v_lshlrev_b32 v{vPG}, 7, v{t0}", f"s_mul_i32 s{sT0}, s{sWAVE}, 4608", f"s_add_u32 s{sT0}, s{sT0}, {L_PK}",
                  f"v_mul_u32_u24 v{t0}, 144, v{vT31}", f"v_and_b32 v{t1}, 32, v{vL}", f"v_add3_u32 v{vKW}, v{t0}, v{t1}, s{sT0}",
                  ], 5, 2)
        hk.update({1: h_touch2, 3: h_tokchk, o.get("pub1", 24): lambda: self.publish(1, "hs")})
        self.loop1("wk", WK, vPQ, acc, hooks=hk)
        self.stamp("kloop")
        phi = V.alloc(16, 4); accv = V.alloc(16, 4)
        I(f"v_bfe_u32 v{t1}, v{vRC}, 3, 1"); I(f"v_lshlrev_b32 v{t1}, 5, v{t1}")
        I(f"v_lshrrev_b32 v{t2}, 4, v{vRC}"); I(f"v_lshl_add_u32 v{t1}, v{t2}, 3, v{t1}")
        I(f"v_mul_u32_u24 v{t2}, 144, v{vROW}"); I(f"v_add3_u32 v{t1}, v{t1}, v{t2}, s{sT0}")
        I(f"v_add_u32 v{vEW}, s{sT0}, v{vL16}")
        self.feature_map(acc, phi)
        for s in range(2):
            for e in range(2):
                I(f"ds_write_b128 v{vKW}, {vr(phi+8*s+4*e,4)} offset:{64*s+16*e}", "pkw")
        self.stamp("ksm")
        hp = {}
        def h_p1(): hp["h1"] = self.poll_issue(vPA, WS_FLAG + 1 * 0x8000)
        def h_pk(j):
            def f():
                for u in range(2): self.afrag(R + 16 + 8 * j + 4 * u, vKR + j, 16 * u * 144, (16 * u + 8) * 144, ("pkr", j, u))
            return f
        hk = seq([f"s_lshl_b32 s{sT1}, s{sTH}, 6", f"v_add_u32 v{vKR+1}, s{sT1}, v{t1}", f"s_xor_b32 s{sT1}, s{sT1}, 64",
                  f"v_add_u32 v{vKR}, s{sT1}, v{t1}", f"s_xor_b32 s{sT1}, s{sWAVE}, 1", f"s_mul_i32 s{sT1}, s{sT1}, 4608",
                  f"s_add_u32 s{sT1}, s{sT1}, {L_PK}", f"v_add_u32 v{vER}, s{sT1}, v{vL16}", f"s_xor_b32 s{sT1}, s{sWAVE}, 2",
                  f"s_mul_i32 s{sT1}, s{sT1}, 4608", f"s_add_u32 s{sT1}, s{sT1}, {L_PK}", f"v_add_u32 v{vER2}, s{sT1}, v{vL16}",
                  f"s_lshl_b32 s{sG0}, s{sM}, 4", f"s_add_u32 s{sG0}, s{sG0}, s{sHD}", f"s_lshl_b32 s{sG0}, s{sG0}, 1",
                  f"s_add_u32 s{sG0}, s{sG0}, s{sTH}", f"s_lshl_b32 s{sG0}, s{sG0}, 12", f"s_add_u32 s{sG0}, s{sG0}, {WS_KVP}",
                  f"s_lshl_b32 s{sG1}, s{sTT}, 1", f"s_add_u32 s{sG1}, s{sG1}, s{sW2}", f"s_mul_i32 s{sG1}, s{sG1}, 14336",
                  f"s_add_u32 s{sG1}, s{sG1}, {WS_HS}"], 1, 2)
        hk.update({o.get("poll1", 6): h_p1, 25: h_pk(0), 26: h_pk(1), 27: lambda: None})
        self.loop1("wv", WV, vPQ, accv, swap=True, hooks=hk)
        self.stamp("vloop")
        I(f"s_cmp_eq_u32 s{sN}, 7"); I("s_cbranch_scc1 L_kv_nohs")
        self.auto = False; q0 = self.qi
        self.poll_check(hp["h1"])
        for s in range(14):
            if s % 4 == 0 and s: I(f"s_add_u32 s{sG1}, s{sG1}, 4096")
            I(f"buffer_load_dwordx4 {ar(aH+4*s,4)}, v{vL16}, {RWS}, s{sG1} offen offset:{(s%4)*1024} sc1", ("hsl", s), lat=800)
        a.label("L_kv_join")
        assert q0 == self.qi; self.auto = True
        self.stamp("hsld")
        vp = V.alloc(8, 4)
        for p in range(8): I(f"v_cvt_pk_bf16_f32 v{vp+p}, v{accv+2*p}, v{accv+2*p+1}")
        for p in range(8): I(f"v_cndmask_b32 v{vp+p}, v{vp+p}, v{vONE}, {sr(sL28,2)}")
        for j, ac in enumerate((accv, acc)):
            for u in range(2):
                a.wait(lg=("pkr", j, u))
                self.mfma(ac, vr(R + 16 + 8 * j + 4 * u, 4), vr(vp + 4 * u, 4), u == 0)
        V.free(vp, 8); V.free(vKW); V.free(vKR, 2)
        self.force("w21")
        for k in range(4): I(f"ds_write_b128 v{vEW}, {vr(accv+4*k,4)} offset:{1024*k}", "exw")
        a.wait(lg="exw", vm=["w20", "w21"]); self.bar()
        for k in range(4): I(f"ds_read_b128 {vr(accv+4*k,4)}, v{vER} offset:{1024*k}", ("exr", k))
        for k in range(4):
            a.wait(lg=("exr", k))
            for e in range(2): I(f"v_pk_add_f32 {vr(acc+4*k+2*e,2)}, {vr(acc+4*k+2*e,2)}, {vr(accv+4*k+2*e,2)}")
            I(f"buffer_store_dwordx4 {vr(acc+4*k,4)}, v{vL16}, {RWS}, s{sG0} offen offset:{1024*k} sc1", "kvp", **ST)
        V.free(vER)
        self.stamp("kv")
        snap3 = self.snapshot()
        I(f"s_cmp_eq_u32 s{sN}, 7"); I("s_cbranch_scc1 L_s3_skip")
        def two_tile_loop(name, nst, U, rowoff, bfrag, btag, ackeep, acsend, last_alt=None, hooks=None, hooks2=None):
            hooks = hooks or {}; hooks2 = hooks2 or {}; au = self.auto; self.auto = False
            pk = V.alloc(); ps = V.alloc()
            I(f"s_cmp_eq_u32 s{sW2}, s{sRHO}"); I(f"s_mov_b32 s{sT1}, {U[1]}"); I(f"s_cselect_b32 s{sT1}, {U[0]}, s{sT1}")
            I(f"v_add_u32 v{pk}, s{sT1}, v{vPW}"); I(f"v_add_u32 v{ps}, s{sT1}, v{vPW2}")
            if last_alt:
                pk1 = V.alloc(); ps1 = V.alloc()
                I(f"v_and_b32 v{pk1}, 32, v{vL}"); I(f"v_lshlrev_b32 v{pk1}, 4, v{pk1}")
                I(f"v_sub_u32 v{ps1}, v{ps}, v{pk1}"); I(f"v_sub_u32 v{pk1}, v{pk}, v{pk1}")
            self.need([f"{name}0", f"{name}1"])
            D = 2
            def rd(s, j):
                b = rowoff(s) * 128; alt = last_alt and last_alt(s)
                if j == 0: self.afrag(R + 8 * (s % 3), pk, b, b + 1024, (name, s, 0), pat1=pk1 if alt else None)
                else: self.afrag(R + 8 * (s % 3) + 4, ps, b, b + 1024, (name, s, 1), pat1=ps1 if alt else None)
            for s in range(D): rd(s, 0); rd(s, 1)
            for s in range(nst):
                a.wait(lg=(name, s, 1), vm=(btag, s))
                self.mfma(ackeep, vr(R + 8 * (s % 3), 4), bfrag(s), s == 0)
                if s + D < nst: rd(s + D, 0)
                if s in hooks: hooks[s]()
                else: self.tick()
                self.mfma(acsend, vr(R + 8 * (s % 3) + 4, 4), bfrag(s), s == 0)
                if s + D < nst: rd(s + D, 1)
                if s in hooks2: hooks2[s]()
            self.release(*U)
            V.free(pk); V.free(ps)
            if last_alt: V.free(pk1); V.free(ps1)
            self.auto = au
        acc3 = V.alloc(16, 4); vX1 = V.alloc(16, 4); x1p = V.alloc(8, 4); ss = V.alloc(4, 2)
        un = []
        for p in range(8): un += [f"v_lshlrev_b32 v{vX1+2*p}, 16, v{vRES+p}", f"v_and_b32 v{vX1+2*p+1}, 0xffff0000, v{vRES+p}"]
        un += [f"v_mov_b32 v{ss+k}, 0" for k in range(4)]
        un += [f"s_mul_i32 s{sT0}, s{sTT}, 14", f"s_add_u32 s{sT0}, s{sT0}, s{sHD}", f"s_lshl_b32 s{sT2}, s{sT0}, 11", f"s_add_u32 s{sT2}, s{sT2}, {WS_X1}",
               f"s_lshl_b32 s{sT3}, s{sT0}, 8", f"s_add_u32 s{sT3}, s{sT3}, {WS_ST}",
               f"v_lshlrev_b32 v{t0}, 3, v{vL}", f"v_mov_b32 v{t1}, {hx(OOB)}", f"v_cndmask_b32 v{t0}, v{t0}, v{t1}, {sr(sUP,2)}"]
        two_tile_loop("w2", 14, W2, lambda s: 16 * s, lambda s: ar(aH + 4 * s, 4), "hsl", acc3, accv, hooks={11: lambda: self.publish(2, "kvp")}, hooks2=seq(un, 0))
        self.stamp("s3loop")
        self.auto = False
        for k in range(4): I(f"ds_write_b128 v{vEW}, {vr(accv+4*k,4)} offset:{1024*k}", "exw")
        for p in range(8): I(f"v_pk_add_f32 {vr(acc3+2*p,2)}, {vr(acc3+2*p,2)}, {vr(vX1+2*p,2)}")
        a.wait(lg="exw"); self.bar()
        for k in range(4): I(f"ds_read_b128 {vr(accv+4*k,4)}, v{vER2} offset:{1024*k}", ("exr", k))
        for k in range(4):
            a.wait(lg=("exr", k))
            for e in range(2): I(f"v_pk_add_f32 {vr(acc3+4*k+2*e,2)}, {vr(acc3+4*k+2*e,2)}, {vr(accv+4*k+2*e,2)}")
            for e in range(2): I(f"v_cvt_pk_bf16_f32 v{x1p+2*k+e}, v{acc3+4*k+2*e}, v{acc3+4*k+2*e+1}")
            if k & 1: I(f"buffer_store_dwordx4 {vr(x1p+2*k-2,4)}, v{vL16}, {RWS}, s{sT2} offen offset:{1024*(k>>1)} sc1", "x1", **ST)
        for p in range(8):
            oo = 2 * (p & 1)
            I(f"v_dot2c_f32_bf16 v{ss+oo}, v{x1p+p}, v{vONE}"); I(f"v_dot2c_f32_bf16 v{ss+oo+1}, v{x1p+p}, v{x1p+p}")
        I(f"v_pk_add_f32 {vr(ss,2)}, {vr(ss,2)}, {vr(ss+2,2)}")
        I(f"v_mov_b32 v{ss+2}, v{ss}"); I(f"v_mov_b32 v{ss+3}, v{ss+1}")
        I(f"v_permlane32_swap_b32 v{ss}, v{ss+2}"); I(f"v_permlane32_swap_b32 v{ss+1}, v{ss+3}")
        I(f"v_pk_add_f32 {vr(ss,2)}, {vr(ss,2)}, {vr(ss+2,2)}")
        I(f"buffer_store_dwordx2 {vr(ss,2)}, v{t0}, {RWS}, s{sT3} offen sc1", "x1", ta=8, lat=900)
        V.free(ss, 4); V.free(vRES, 8); V.free(acc3, 16); V.free(vX1, 16); V.free(vEW); V.free(vER2)
        self.auto = True
        a.label("L_s3_join")
        self.stamp("s3epi")
        vP3 = [V.alloc() for _ in range(4)]; vCS = V.alloc(16, 4); pk = V.alloc(); ps = V.alloc()
        hk = seq([f"v_and_b32 v{t0}, 3, v{vROW}", f"v_lshlrev_b32 v{t0}, 6, v{t0}", f"v_lshl_add_u32 v{t1}, v{vROW}, 8, v{vRC}",
                  f"v_add_u32 v{vP3[0]}, v{t0}, v{t1}"] + [f"v_xor_b32 v{vP3[k]}, {64*k}, v{vP3[0]}" for k in range(1, 4)] +
                 [f"v_add_u32 v{pk}, s{sQUART}, v{vPW}", f"v_add_u32 v{ps}, s{sQUART}, v{vPW2}",
                  f"s_lshl_b32 s{sT2}, s{sP}, 2", f"s_add_u32 s{sT2}, s{sT2}, s{sWAVE}", f"s_mul_i32 s{sG0}, s{sT2}, {UNIT}",
                  f"s_add_u32 s{sG0}, s{sG0}, {WS_X1}", f"s_add_u32 s{sG1}, s{sG0}, {UNIT}", f"s_mul_i32 s{sT0}, s{sR4}, 7168",
                  f"s_add_u32 s{sG0}, s{sG0}, s{sT0}", f"s_mul_i32 s{sT0}, s{sT2}, 3584", f"s_add_u32 s{sT0}, s{sT0}, {WS_ST}",
                  f"v_lshlrev_b32 v{t0}, 3, v{vT31}", f"v_lshrrev_b32 v{t1}, 5, v{vL}", f"v_mul_u32_u24 v{t2}, 1792, v{t1}",
                  f"v_add_u32 v{t0}, v{t0}, v{t2}", f"s_lshl_b32 s{sT1}, s{sJ}, 12", f"s_add_u32 s{sT1}, s{sT1}, {WS_CS}"], 1, 2)
        def h_cs(k0):
            def f():
                for k in range(k0, k0 + 2): I(f"buffer_load_dwordx4 {vr(vCS+4*k,4)}, v{vL16}, {RWS}, s{sT1} offen offset:{1024*k} sc1", "csl")
            return f
        def h_win(lst, ws): return lambda: [self.prewin(x, ws) for x in lst]
        hk.update({17: h_cs(0), 19: h_cs(2), 18: h_win(vP3[:2], (1, 2)), 20: h_win(vP3[2:], (1, 2)), 21: h_win([pk, ps], (1,)),
                   o.get("pub3", 25): lambda: self.publish(3, "x1")})
        self.loop1("wq", WQ, vPQ, acc, hooks=hk)
        self.bar()
        self.stamp("qloop")
        mv = dict(n=0)
        def mover(force=False):
            s = mv["n"]
            if s >= NREG or not self.issued(("w4", 2 * s + 1)): return False
            if not force and a.vm_t[a._last(a.vm, ("w4", 2 * s + 1))] + o.get("mvm", 150) > a.t: return False
            a.wait(vm=("w4", 2 * s + 1))
            sl = [self.where[("w4", 2 * s)], self.where[("w4", 2 * s + 1)]]
            for j, pat in enumerate((pk, ps)): self.afrag(aW4 + 8 * s + 4 * j, pat, sl[0] * 4096, sl[1] * 4096, ("mv", s), f=ar)
            self.release_slots(sl); mv["n"] += 1
            return True
        self.feature_map(acc, phi)
        self.drop_pat(vPQ)
        self.stamp("qsm")
        I(f"s_cmp_eq_u32 s{sN}, 7"); I("s_cbranch_scc1 L_reduce")
        self.auto = False
        h3p = self.poll_issue(vPG, WS_FLAG + 3 * 0x8000)
        vST = V.alloc(14, 2); vMU = V.alloc(4, 4)
        acc5 = [acc, accv, V.alloc(16, 4), V.alloc(16, 4)]
        def w3a(s): return W3[s // 7] + (s % 7) * 4096
        def rd5(s, k):
            if s % 7 == 0 and k == 0: self.need(f"w3{s//7}")
            self.afrag(R + 16 * (s % 2) + 4 * k, vP3[k], w3a(s), w3a(s) + 2048, ("w3", s, k))
            if s % 7 == 6 and k == 3: self.release(W3[s // 7])
        self.need(["w30", "w31", "w32"])
        for k in range(4): rd5(0, k)
        self.poll_check(h3p)
        a.t += o.get("gap2", 600)
        self.stamp("poll3")
        def ldx1(s):
            if s % 7 == 0 and s: adv(sG0, sG1, 7168, 4)()
            if s % 7 == 4: I(f"s_add_u32 s{sG2}, s{sG0}, 4096")
            I(f"buffer_load_dwordx4 {ar(aB+4*s,4)}, v{vL16}, {RWS}, s{sG0 if s % 7 < 4 else sG2} offen offset:{(s%7%4)*1024} sc1", ("x1l", s), lat=800)
        ex5 = [lambda k=k: I(f"buffer_load_dwordx2 {vr(vST+2*k,2)}, v{t0}, {RWS}, s{sT0} offen offset:{256*k} sc1", "stl", ta=8) for k in range(7)]
        K0 = vST + 4; K1 = vST + 6
        c0 = -2.0 * math.sqrt(2.0 / math.pi) * L2E; c1 = c0 * 0.044715
        side = [lambda: a.wait(vm="stl")]
        sl_ = []
        for k in range(1, 7): sl_ += [f"v_add_f32 v{vST}, v{vST}, v{vST+2*k}", f"v_add_f32 v{vST+1}, v{vST+1}, v{vST+2*k+1}"]
        sl_ += [f"v_mov_b32 v{vST+2}, v{vST}", f"v_mov_b32 v{vST+3}, v{vST+1}", f"v_mov_b32 v{vMU+2}, 0", f"v_mov_b32 v{vMU+3}, 0",
                f"v_permlane32_swap_b32 v{vST}, v{vST+2}", f"v_permlane32_swap_b32 v{vST+1}, v{vST+3}",
                f"v_add_f32 v{vST}, v{vST}, v{vST+2}", f"v_add_f32 v{vST+1}, v{vST+1}, v{vST+3}",
                f"v_mul_f32 v{vST}, {hx(f2u(-1/448))}, v{vST}", f"v_mul_f32 v{vST+1}, {hx(f2u(1/448))}, v{vST+1}",
                f"v_fma_f32 v{vST+1}, -v{vST}, v{vST}, v{vST+1}", f"v_cvt_pk_bf16_f32 v{vMU+1}, v{vST}, v{vST}",
                f"v_max_f32 v{vST+1}, 0, v{vST+1}", f"v_and_b32 v{vST+2}, 0xffff0000, v{vMU+1}",
                f"v_add_f32 v{vST+1}, {hx(f2u(1e-5))}, v{vST+1}", f"v_sub_f32 v{vST+2}, v{vST}, v{vST+2}",
                f"v_rsq_f32 v{vST+3}, v{vST+1}", f"v_cvt_pk_bf16_f32 v{vMU}, v{vST}, v{vST+2}",
                f"v_sqrt_f32 v{K1}, v{vST+1}", f"v_mul_f32 v{K0}, {hx(f2u(c0))}, v{vST+3}",
                f"v_mul_f32 v{K0+1}, v{vST+3}, v{vST+3}", f"v_mul_f32 v{K0+1}, v{K0+1}, v{vST+3}", f"v_mul_f32 v{K0+1}, {hx(f2u(c1))}, v{K0+1}",
                f"s_mul_i32 s{sT0}, s{sT2}, 14", f"s_add_u32 s{sT0}, s{sT0}, s{sJ}", f"s_lshl_b32 s{sT0}, s{sT0}, 13", f"s_add_u32 s{sT0}, s{sT0}, {WS_H3}",
                f"v_and_b32 v{t0}, 1, v{vL}", f"s_lshl_b32 s{sT1}, s{sHD}, 1", f"v_add_u32 v{t0}, s{sT1}, v{t0}", f"v_lshlrev_b32 v{vPA}, 10, v{t0}"]
        side += [(lambda x: lambda: I(x))(x) for x in sl_]
        DX = o.get("dx", 7); nx = DX
        for s in range(DX): ldx1(s)
        self.mover = mover
        for s in range(28):
            for k in range(4):
                a.wait(lg=("w3", s, k), vm=("x1l", s))
                self.mfma(acc5[k], vr(R + 16 * (s % 2) + 4 * k, 4), ar(aB + 4 * s, 4), s == 0)
                if s + 1 < 28: rd5(s + 1, k)
                if k == 3 and s % 7 == 0 and s: self.bar()
                elif nx < 28:
                    if k in (0, 2): ldx1(nx); nx += 1
                    elif k == 1: mover()
                elif ex5: ex5.pop(0)()
                elif s >= 18 and side and k in (1, 3):
                    for _ in range(3):
                        if side: side.pop(0)()
                else: self.tick()
        assert not side
        a.wait(vm="csl")
        for k in range(4): self.mfma(acc5[k], vr(vCS + 4 * k, 4), vr(vMU, 4), False); self.tick()
        self.bar()
        for p in vP3: self.drop_pat(p)
        V.free(vCS, 16); V.free(vMU, 4)
        self.stamp("s5loop")
        self.auto = True
        outp = [V.alloc(8, 4), V.alloc(8, 4)]
        for k in range(4):
            if k == 2: I(f"s_add_u32 s{sT0}, s{sT0}, 4096")
            if k == 3: self.auto = bool(o.get("auto53", 0))
            def st5(u, k=k): I(f"buffer_store_dwordx4 {vr(outp[k&1]+4*u,4)}, v{vL16}, {RWS}, s{sT0} offen offset:{(k&1)*2048+1024*u} sc1", "h3", **ST)
            self.gelu_tile(acc5[k], K0, K1, outp[k & 1], after=st5)
        for x in outp: V.free(x, 8)
        V.free(vST, 14)
        self.auto = False
        self.stamp("s5epi")
        a.label("L_s6")
        h4p = self.poll_issue(vPA, WS_FLAG + 4 * 0x8000 + 7 * 128)
        I(f"s_lshl_b32 s{sT0}, s{sHD}, 12"); I(f"s_add_u32 s{sT0}, s{sT0}, {WS_KVF}")
        self.tick(o.get("tk6", 4))
        self.publish(5, "h3")
        self.poll_check(h4p)
        for k in range(4): I(f"buffer_load_dwordx4 {vr(R+4*k,4)}, v{vL16}, {RWS}, s{sT0} offen offset:{1024*k} sc1", ("kvl", k), lat=800)
        self.auto = True
        vXA = V.alloc(); vXF = V.alloc(8, 4)
        I(f"v_mul_u32_u24 v{t0}, 896, v{vT31}"); I(f"v_lshrrev_b32 v{t1}, 5, v{vL}"); I(f"v_lshl_add_u32 v{t0}, v{t1}, 4, v{t0}")
        I(f"s_mul_i32 s{sT0}, s{sTT}, {32*896}"); I(f"s_lshl_b32 s{sT1}, s{sHD}, 6"); I(f"s_add_u32 s{sT0}, s{sT0}, s{sT1}")
        I(f"v_add_u32 v{vXA}, s{sT0}, v{t0}")
        for i in range(2): I(f"buffer_load_dwordx4 {vr(vXF+4*i,4)}, v{vXA}, {RX}, 0 offen offset:{32*i}", "xf", ta=64)
        I(f"s_lshl_b32 s{sT0}, s{sTT}, 4"); I(f"s_add_u32 s{sT0}, s{sT0}, s{sHD}"); I(f"s_lshl_b32 s{sT0}, s{sT0}, 11"); I(f"s_add_u32 s{sT0}, s{sT0}, {WS_O}")
        self.tick(6)
        for k in range(4):
            a.wait(vm=("kvl", k))
            self.mfma(acc, vr(R + 4 * k, 4), vr(phi + 4 * k, 4), k == 0); self.tick()
        dn = V.alloc(2)
        I(f"v_add_f32 v{dn+1}, {hx(f2u(1e-6))}, v{acc+12}")
        I(f"v_rcp_f32 v{dn+1}, v{dn+1}")
        I(f"v_mov_b32 v{dn}, v{dn+1}")
        I(f"v_permlane32_swap_b32 v{dn+1}, v{dn}")
        for p in range(8): I(f"v_pk_mul_f32 {vr(acc+2*p,2)}, {vr(acc+2*p,2)}, {vr(dn,2)} op_sel_hi:[1,0]")
        for p in range(8): I(f"v_cvt_pk_bf16_f32 v{phi+p}, v{acc+2*p}, v{acc+2*p+1}")
        I(f"v_and_b32 v{phi+6}, v{phi+6}, v{self.vMLO}"); I(f"v_and_b32 v{phi+7}, v{phi+7}, v{self.vMLO}")
        V.free(dn, 2)
        self.auto = False
        for u in range(2): I(f"buffer_store_dwordx4 {vr(phi+4*u,4)}, v{vL16}, {RWS}, s{sT0} offen offset:{1024*u} sc1", "o", **ST)
        I(f"s_cmp_eq_u32 s{sN}, 7"); I("s_cbranch_scc1 L_spare_end")
        self.stamp("s6")
        h5p = self.poll_issue(vPG, WS_FLAG + 5 * 0x8000)
        I(f"s_xor_b32 s{sT1}, s{sTT}, 1"); I(f"s_mov_b32 s{sT0}, s{sTT}")
        for x in (sT0, sT1):
            I(f"s_lshl_b32 s{x}, s{x}, 2"); I(f"s_add_u32 s{x}, s{x}, s{sWAVE}"); I(f"s_mul_i32 s{x}, s{x}, {UNIT}"); I(f"s_add_u32 s{x}, s{x}, {WS_H3}")
        I(f"s_lshl_b32 s{sG2}, s{sR7}, 12")
        I(f"v_and_b32 v{t0}, 7, v{vL}"); I(f"s_lshl_b32 s{sT2}, s{sM}, 3"); I(f"v_add_u32 v{t0}, s{sT2}, v{t0}"); I(f"v_lshlrev_b32 v{vPA}, 7, v{t0}")
        I(f"s_lshl_b32 s{sT2}, s{sTT}, 1"); I(f"s_add_u32 s{sT2}, s{sT2}, s{sW2}"); I(f"s_lshl_b32 s{sT2}, s{sT2}, 14"); I(f"s_add_u32 s{sT2}, s{sT2}, {WS_O}")
        while mover(): pass
        self.tick(o.get("tk7", 3))
        print("at S7 start: moved", mv["n"], "queue left", len(self.queue) - self.qi, file=sys.stderr)
        def breg(s, i): return ar(aB + 8 * (s % 14) + 4 * i, 4)
        def ldb(s, i):
            if s % 4 == 0 and i == 0:
                if s:
                    I(f"s_add_u32 s{sG2}, s{sG2}, 4096"); I(f"s_cmp_eq_u32 s{sG2}, {UNIT}"); I(f"s_cselect_b32 s{sG2}, 0, s{sG2}")
                I(f"s_add_u32 s{sG0}, s{sT0}, s{sG2}"); I(f"s_add_u32 s{sG1}, s{sT1}, s{sG2}")
            I(f"buffer_load_dwordx4 {breg(s,i)}, v{vL16}, {RWS}, s{(sG0,sG1)[i]} offen offset:{(s%4)*1024} sc1", ("h3l", s), lat=800)
        def rd7(s, j):
            if j == 0: self.need(("w4", 2 * s + 1), priv=True)
            self.afrag(R + 8 * (s % 3) + 4 * j, (pk, ps)[j], self.where[("w4", 2 * s)] * 4096, self.where[("w4", 2 * s + 1)] * 4096, ("w4r", s))
        def ldo(s):
            if s % 4 == 0 and s: I(f"s_add_u32 s{sT2}, s{sT2}, 4096")
            I(f"buffer_load_dwordx4 {ar(4*s,4)}, v{vL16}, {RWS}, s{sT2} offen offset:{(s%4)*1024} sc1", ("ol", s), lat=800)
        self.poll_check(h5p)
        a.t += o.get("gap3", 600)
        self.stamp("poll5")
        DB = o.get("db", 4); no = 0
        for s in range(DB): ldb(s, 0); ldb(s, 1)
        self.bar(); self.flag_store(6)
        nb = DB
        for s in range(28):
            if s < NREG:
                while mv["n"] <= s:
                    self.force(("w4", 2 * mv["n"] + 1)); mover(True)
                a.wait(lg=("mv", s), vm=("h3l", s))
            else: a.wait(lg=("w4r", s), vm=("h3l", s))
            for i in range(2):
                for j in range(2):
                    A_ = ar(aW4 + 8 * s + 4 * j, 4) if s < NREG else vr(R + 8 * (s % 3) + 4 * j, 4)
                    self.mfma(acc5[2 * i + j], A_, breg(s, i), s == 0)
                    if i == 0 and NREG <= s + 2 < 28: rd7(s + 2, j)
                    if nb < 28 and nb < s + 13 and (nb < s + DB + 1 or a.ta_free - a.t < self.backlog) and j == 0:
                        ldb(nb, 0); ldb(nb, 1); nb += 1
                    elif nb >= 28 and self.qi >= len(self.queue) and s >= o.get("ochk", 16) + 1 and no < 16 and a.ta_free - a.t < self.backlog:
                        ldo(no); no += 1
                    else: self.tick()
            if s == o.get("opoll", 9): h6p = self.poll_issue(vPA, WS_FLAG + 6 * 0x8000)
            if s == o.get("ochk", 16): self.poll_check(h6p)
        self.mover = None
        self.drop_pat(pk); self.drop_pat(ps)
        self.stamp("s7loop")
        self.force("wo1")
        while no < 16: ldo(no); no += 1
        sk = V.alloc(16, 4); ssd = V.alloc(16, 4); vX1 = V.alloc(16, 4)
        wr = V.alloc(); rd = [V.alloc() for _ in range(3)]
        I(f"v_add_u32 v{wr}, s{sQUART}, v{vL16}")
        for k, x in enumerate((2, 1, 3)): I(f"v_xor_b32 v{rd[k]}, {x << 10}, v{wr}")
        msl = list(range(0, 14)) + [21, 22]
        def mw(c, src):
            v, of = self.laddr(wr, msl[c] * 4096); I(f"ds_write_b128 {v}, {vr(src,4)} offset:{of}", "fw")
        def mr(c, dst, r_):
            v, of = self.laddr(r_, msl[c] * 4096); I(f"ds_read_b128 {vr(dst,4)}, {v} offset:{of}", ("fr", c))
        hk = {s: (lambda s=s: mw(s, acc5[1 + s // 4] + 4 * (s % 4))) for s in range(12)}
        def h_fb(): a.wait(lg="fw"); self.bar()
        hk[12] = h_fb
        for s in range(13, 16): hk[s] = (lambda s=s: [mr(4 * (s - 13) + k, acc5[1 + s - 13] + 4 * k, rd[s - 13]) for k in range(2)])
        un = []
        for p in range(8): un += [f"v_lshlrev_b32 v{vX1+2*p}, 16, v{x1p+p}", f"v_and_b32 v{vX1+2*p+1}, 0xffff0000, v{x1p+p}"]
        un += [f"v_add_f32 v{acc5[0]+k}, v{acc5[0]+k}, v{vX1+k}" for k in range(16)]
        hk2 = seq(un, 1, 1, 3)
        for s in range(13, 16): hk2[s] = (lambda s=s: [mr(4 * (s - 13) + k, acc5[1 + s - 13] + 4 * k, rd[s - 13]) for k in range(2, 4)])
        two_tile_loop("wo", 16, WO, lambda s: 28 * (s >> 1) + 16 * (s & 1), lambda s: ar(4 * s, 4), "ol", sk, ssd, last_alt=lambda s: s & 1, hooks=hk, hooks2=hk2)
        self.stamp("woloop")
        b = acc5[0]; e_ = acc5[1]
        a.wait(vm="xf")
        for i in range(2):
            I(f"v_permlane32_swap_b32 v{vXF+4*i}, v{vXF+4*i+2}"); I(f"v_permlane32_swap_b32 v{vXF+4*i+1}, v{vXF+4*i+3}")
        for p in range(4):
            I(f"v_lshlrev_b32 v{vX1+2*p}, 16, v{vXF+p}"); I(f"v_and_b32 v{vX1+2*p+1}, 0xffff0000, v{vXF+p}")
        for k in range(4): mw(12 + k, ssd + 4 * k)
        for c in range(12):
            if c % 2 == 0: a.wait(lg=("fr", c + 1))
            src = acc5[1 + c // 4] + 4 * (c % 4); dst = b + 4 * (c % 4)
            for e in range(2): I(f"v_pk_add_f32 {vr(dst+2*e,2)}, {vr(dst+2*e,2)}, {vr(src+2*e,2)}")
        for p in range(8): I(f"v_pk_mul_f32 {vr(e_+2*p,2)}, {vr(b+2*p,2)}, {sr(sL2E,2)} neg_lo:[1,0] neg_hi:[1,0]")
        a.wait(lg="fw"); self.bar()
        for k in range(4): mr(12 + k, ssd + 4 * k, rd[0])
        for k in range(16): I(f"v_exp_f32 v{e_+k}, v{e_+k}")
        for p in range(4, 8):
            I(f"v_lshlrev_b32 v{vX1+2*p}, 16, v{vXF+p}"); I(f"v_and_b32 v{vX1+2*p+1}, 0xffff0000, v{vXF+p}")
        for p in range(8): I(f"v_pk_add_f32 {vr(e_+2*p,2)}, {vr(e_+2*p,2)}, 1.0 op_sel_hi:[1,0]")
        for k in range(16): I(f"v_rcp_f32 v{e_+k}, v{e_+k}")
        a.wait(lg=("fr", 15))
        for p in range(8): I(f"v_pk_add_f32 {vr(sk+2*p,2)}, {vr(sk+2*p,2)}, {vr(ssd+2*p,2)}")
        for p in range(8): I(f"v_pk_mul_f32 {vr(b+2*p,2)}, {vr(b+2*p,2)}, {vr(e_+2*p,2)}")
        for i in range(2):
            for p in range(4 * i, 4 * i + 4): I(f"v_pk_fma_f32 {vr(b+2*p,2)}, {vr(b+2*p,2)}, {vr(sk+2*p,2)}, {vr(vX1+2*p,2)}")
            for p in range(4 * i, 4 * i + 4): I(f"v_cvt_pk_bf16_f32 v{vXF+p}, v{b+2*p}, v{b+2*p+1}")
            I(f"v_permlane32_swap_b32 v{vXF+4*i}, v{vXF+4*i+2}"); I(f"v_permlane32_swap_b32 v{vXF+4*i+1}, v{vXF+4*i+3}")
            I(f"buffer_store_dwordx4 {vr(vXF+4*i,4)}, v{vXA}, {ROUT}, 0 offen offset:{32*i}", "out")
        self.stamp("final")
        print("model end", a.t, "vgpr hi", V.hi, file=sys.stderr)
        a.label("L_fin")
        if self.prof:
            I("s_waitcnt vmcnt(0)")
            I(f"s_memrealtime {sr(sPF,2)}"); I(f"s_memtime {sr(sL2E,2)}"); I("s_waitcnt lgkmcnt(0)")
            I(f"v_writelane_b32 v{self.vPROF}, s{sPF}, 31"); I(f"v_writelane_b32 v{self.vPROF}, s{sL2E}, 29")
            I(f"s_lshl_b32 s{sT0}, s2, 2"); I(f"s_add_u32 s{sT0}, s{sT0}, s{sWAVE}"); I(f"s_lshl_b32 s{sT0}, s{sT0}, 7"); I(f"s_add_u32 s{sT0}, s{sT0}, {WS_PROF}")
            I(f"v_lshlrev_b32 v{t0}, 2, v{vL}")
            I("s_mov_b32 exec_hi, 0")
            I(f"buffer_store_dword v{self.vPROF}, v{t0}, {RWS}, s{sT0} offen")
        a.label("L_end")
        I("s_endpgm")

        a.label("L_abort")
        I(f"v_mov_b32 v{t0}, 0xdead"); I(f"buffer_store_dword v{t0}, v{vZ}, {RDBG}, 0 offen offset:16")
        I("s_endpgm")
        a.label("L_tok_retry")
        I(f"s_mov_b32 s{sCNT}, {POLL_MAX}")
        a.label("L_tok_loop")
        I(f"buffer_load_dwordx2 {vr(vTK2,2)}, v{vZ}, {RDBG}, 0 offen sc1")
        I(f"s_sub_u32 s{sCNT}, s{sCNT}, 1"); I("s_cbranch_scc1 L_abort")
        I("s_waitcnt vmcnt(0)")
        I(f"v_readfirstlane_b32 s{sT0}, v{vTK2+1}")
        I(f"s_cmp_eq_u32 s{sT0}, 0"); I("s_cbranch_scc1 L_tok_loop")
        I("s_branch L_tok_ok")
        self.emit_spins()
        a.label("L_s1_spare")
        self.restore(spare1[0])
        self.loop1("w1", W1, vPW, acc, swap=True, pre=xpre, bfrag=lambda s: vr(vONE, 4), hooks=hk1)
        self.release(*XN); a.wait(lg="res"); self.bar()
        while self.qi < spare1[1]: assert self.pump(1)
        assert self.qi == spare1[1]
        so = spare_out
        I(f"s_lshl_b32 s{sT0}, s{sM}, 1"); I(f"s_add_u32 s{sT0}, s{sT0}, s{sW2}"); I(f"s_lshl_b32 s{sT0}, s{sT0}, 10"); I(f"s_add_u32 s{sT0}, s{sT0}, {WS_CS}")
        I(f"v_cvt_pk_bf16_f32 v{so}, v{acc}, v{acc}"); I(f"v_and_b32 v{so+1}, 0xffff0000, v{so}"); I(f"v_sub_f32 v{so+1}, v{acc}, v{so+1}")
        I(f"v_mov_b32 v{so+2}, 0"); I(f"v_mov_b32 v{so+3}, 0")
        I(f"v_cvt_pk_bf16_f32 v{so+1}, v{so+1}, v{so+2}")
        I(f"v_and_b32 v{so}, v{so}, v{self.vMLO}"); I(f"v_and_b32 v{so+1}, v{so+1}, v{self.vMLO}")
        I(f"buffer_store_dwordx4 {vr(so,4)}, v{vL16}, {RWS}, s{sT0} offen sc1")
        I("s_waitcnt vmcnt(0)")
        I("s_branch L_s1_join")
        a.label("L_kv_nohs")
        I("s_waitcnt vmcnt(0)"); I("s_nop 7")
        I("s_branch L_kv_join")
        a.label("L_s3_skip")
        self.restore(snap3)
        self.force("wq1")
        I("s_waitcnt vmcnt(0) lgkmcnt(0)"); I("s_barrier"); self.flag_store(2)
        I("s_branch L_s3_join")
        a.label("L_reduce")
        I(f"v_lshlrev_b32 v{t0}, 3, v{vT31}"); I(f"s_lshr_b32 s{sT0}, s{sM}, 2"); I(f"v_add_u32 v{t0}, s{sT0}, v{t0}")
        I(f"v_lshlrev_b32 v{vPA}, 7, v{t0}")
        B0 = 192
        self.V = V = RA("v", 256, B0)
        assert max(phi + 16, vPA + 1, acc + 16, pk + 1, ps + 1, R + 32) <= B0
        self.poll(vPA, WS_FLAG + 2 * 0x8000)
        I(f"s_lshl_b32 s{sT0}, s{sM}, 12"); I(f"s_add_u32 s{sT0}, s{sT0}, s{sQUART}"); I(f"s_add_u32 s{sT0}, s{sT0}, {WS_KVP}")
        def rpl(k):
            I(f"buffer_load_dwordx4 {vr(B0+4+4*(k%15) if k else B0,4)}, v{vL16}, {RWS}, s{sT0} offen sc1", ("rp", k))
            I(f"s_add_u32 s{sT0}, s{sT0}, {16*8192}")
        for k in range(16): rpl(k)
        for k in range(1, 32):
            a.wait(vm=("rp", k))
            for e in range(2): I(f"v_pk_add_f32 {vr(B0+2*e,2)}, {vr(B0+2*e,2)}, {vr(B0+4+4*(k%15)+2*e,2)}")
            if k + 15 < 32: rpl(k + 15)
        I(f"v_cvt_pk_bf16_f32 v{B0+4}, v{B0}, v{B0+1}"); I(f"v_cvt_pk_bf16_f32 v{B0+5}, v{B0+2}, v{B0+3}")
        I(f"s_lshl_b32 s{sT0}, s{sM}, 1"); I(f"s_add_u32 s{sT0}, s{sT0}, s{sW2}"); I(f"s_lshl_b32 s{sT0}, s{sT0}, 10")
        I(f"s_lshl_b32 s{sT1}, s{sTH}, 3"); I(f"s_add_u32 s{sT0}, s{sT0}, s{sT1}"); I(f"s_add_u32 s{sT0}, s{sT0}, {WS_KVF}")
        I(f"buffer_store_dwordx2 {vr(B0+4,2)}, v{vL16}, {RWS}, s{sT0} offen sc1")
        I(f"v_and_b32 v{t0}, 1, v{vL}"); I(f"s_lshl_b32 s{sT1}, s{sHD}, 1"); I(f"v_add_u32 v{t0}, s{sT1}, v{t0}"); I(f"v_lshlrev_b32 v{vPA}, 10, v{t0}")
        I("s_waitcnt vmcnt(0)"); I("s_barrier"); self.flag_store(4)
        I("s_branch L_s6")
        self.emit_spins()
        a.label("L_spare_end")
        I("s_waitcnt vmcnt(0)"); I("s_barrier"); self.flag_store(6)
        I("s_branch L_fin")
        a.raw('.section .rodata,"a"'); a.raw(".p2align 6"); a.raw(f".amdhsa_kernel {NAME}_kernel")
        a.raw("  .amdhsa_next_free_vgpr 512"); a.raw("  .amdhsa_next_free_sgpr 102"); a.raw("  .amdhsa_accum_offset 256")
        a.raw("  .amdhsa_group_segment_fixed_size 0"); a.raw("  .amdhsa_kernarg_size 96"); a.raw("  .amdhsa_user_sgpr_count 2")
        a.raw("  .amdhsa_user_sgpr_kernarg_segment_ptr 1"); a.raw("  .amdhsa_system_sgpr_workgroup_id_x 1"); a.raw(".end_amdhsa_kernel")
        if self.prof: a.raw("; STAMPS " + " ".join(self.stamps))
        return a.text()

    def snapshot(self):
        a = self.a
        return dict(vm=list(a.vm), vm_done=a.vm_done, lg=list(a.lg), lg_done=a.lg_done, hist=list(a.hist), vm_t=list(a.vm_t), lg_t=list(a.lg_t),
                    tm=(a.t, a.mfma_free, a.ta_free), slots=copy.deepcopy(self.slots), qi=self.qi, synced=self.synced_vm, win=dict(self.win), used=list(self.V.used))
    def restore(self, s):
        a = self.a
        a.vm = list(s["vm"]); a.vm_done = s["vm_done"]; a.lg = list(s["lg"]); a.lg_done = s["lg_done"]; a.hist = list(s["hist"])
        a.vm_t = list(s["vm_t"]); a.lg_t = list(s["lg_t"]); a.t, a.mfma_free, a.ta_free = s["tm"]
        self.slots = copy.deepcopy(s["slots"]); self.qi = s["qi"]; self.synced_vm = s["synced"]; self.win = dict(s["win"]); self.V.used = list(s["used"])

if __name__ == "__main__":
    prof = "--prof" in sys.argv
    out = [x for x in sys.argv[1:] if not x.startswith("--")][0]
    opts = {}
    for x in sys.argv[1:]:
        if x.startswith("--o:"):
            k, v = x[4:].split("="); opts[k] = int(v) if v.isdigit() else v
    g = Gen(prof=prof, opts=opts)
    txt = g.build()
    if opts.get("align", 1):
        txt, nw, nn = align_pass(txt); print("align: widened", nw, "nops", nn, file=sys.stderr)
    hdr = open(f"cdna_kernels/{NAME}.s.ref").read().split("; Override")[0] if "--hdr" in sys.argv else ""
    open(out, "w").write(hdr + txt)
    print("instrs", g.a.count, "nops", g.a.nops, "agpr hi", g.A.hi, "bars", g.nbar, file=sys.stderr)
```

```python
import sys, struct, math, copy
from asmlib import Asm, align_pass, VALU_KINDS

NAME = "recurrent_scan__linear_kernel_hedgehog__mixer_s_mlp__prompt"
def f2u(x): return struct.unpack("<I", struct.pack("<f", x))[0]
def hx(x): return "0x%08x" % (x & 0xffffffff)

WS_FLAG  = 0x1000
WS_PROF  = 0x80000
WS_HS    = 0x100000
WS_X1    = 0x300000
WS_ST    = 0x4C0000
WS_CS    = 0x500000
WS_KVP   = 0x600000
WS_KVF   = 0xA00000
WS_O     = 0xB00000
WS_H3    = 0xE00000
WS_SIZE  = 0x1500000
OOB      = 0x7fffff00
NSLOT = 35
UNIT = 28672
L_PK  = NSLOT * 4096
L_R2  = L_PK + 4 * 4608
LDS_BYTES = 163840
POLL_MAX = 200000
L2E = math.log2(math.e)
ST = dict(ta=30, lat=900)

class RA:
    def __init__(self, kind, n, start=0):
        self.kind = kind; self.used = [False] * n
        for i in range(start): self.used[i] = True
        self.hi = start
    def alloc(self, n=1, align=1):
        if n >= 2: align = max(align, 2)
        for b in range(0, len(self.used) - n + 1, align):
            if not any(self.used[b:b + n]):
                for i in range(b, b + n): self.used[i] = True
                self.hi = max(self.hi, b + n)
                return b
        raise RuntimeError("out of regs " + self.kind)
    def free(self, b, n=1):
        for i in range(b, b + n):
            assert self.used[i]; self.used[i] = False

def vr(b, n=1): return f"v{b}" if n == 1 else f"v[{b}:{b+n-1}]"
def ar(b, n=1): return f"a{b}" if n == 1 else f"a[{b}:{b+n-1}]"
def sr(b, n=1): return f"s{b}" if n == 1 else f"s[{b}:{b+n-1}]"

sM, sN, sWAVE, sTH, sW2 = 3, 4, 5, 6, 7
RX, RQKV, RPHI, RWO, RW1, RW2, RW3, RW4, ROUT, RDBG, RWS = [sr(32 + 4 * i, 4) for i in range(11)]
sQUART, sOFF = 76, 77
sW1B, sW1S, sW1B2 = 78, 79, 80
sKA, sKB = 81, 82
sW2A, sW2B = 83, 84
sW3 = 85
sW4 = 86
sJ, sP, sCNT, sFLAG, sO64, sRHO = 87, 88, 89, 90, 91, 92
sR4, sR7 = 93, 31
sUP = 94
sL28 = 96
sL2E = 98
sT0, sT1, sT2, sT3 = 8, 9, 10, 11
sW3L, sW4L = 12, 13
sTT, sHD = 14, 15
sG0, sG1, sG2, sG3 = 16, 17, 18, 19
sPO = 20
sLW = 21
sM33 = 22
sPF = 100

class Gen:
    def __init__(self, prof=False, opts=None):
        self.o = opts or {}
        self.a = Asm(); self.auto = False; self.mover = None; self.backlog = self.o.get("backlog", 100)
        self.V = RA("v", 256, 1); self.A = RA("a", 256)
        self.prof = prof; self.nstamp = 0; self.stamps = []
        self.slots = [dict(free=True, done=None, priv=False) for _ in range(NSLOT)]
        self.queue = []; self.qi = 0
        self.synced_vm = 0; self.nbar = 0
        self.win = {}; self.npoll = 0; self.ool = []; self.where = {}; self.pf = []; self.pf_next = 0

    def I(self, text, tag=None, **kw):
        c = self.a.I(text, tag, **kw)
        if self.auto and c.kind in VALU_KINDS and not self.a.scc_live: self.tick()
        return c
    def tick(self, n=1):
        au = self.auto; self.auto = False
        if self.mover: self.mover()
        if self.pf and self.a.t >= self.pf_next and self.a.ta_free - self.a.t < self.backlog:
            R, k = self.pf.pop(0); self.pf_next = self.a.t + self.o.get("pfgap", 1500); I = self.a.I
            I(f"s_add_u32 s{sPO}, s{sLW}, {k * 33 * 128}"); I(f"s_mov_b64 exec, {sr(sM33,2)}")
            I(f"buffer_load_dword v{self.vTD}, v{self.vTCH}, {R}, s{sPO} offen", "touch", ta=66)
            I("s_mov_b64 exec, -1")
        while n > 0 and self.a.ta_free - self.a.t < self.backlog:
            if not self.can_issue() and self.qi < len(self.queue) and self.queue[self.qi]["slot"] is None:
                c = [self.slots[x]["done"] for x in self.queue[self.qi]["pool"] if self.slots[x]["priv"] and self.slots[x]["done"] is not None]
                c = [d for d in c if self.a.lg_t[d - 1] <= self.a.t]
                if c: self.a.I(f"s_waitcnt lgkmcnt({min(15, len(self.a.lg) - min(c))})")
            if not self.pump(1): break
            n -= 1
        self.auto = au
    def stamp(self, name):
        if not self.prof: return
        if self.o.get("stamps") and name not in self.o["stamps"].split(","): return
        I = self.a.I
        I(f"s_memtime {sr(sPF,2)}"); I("s_waitcnt lgkmcnt(0)")
        I(f"v_writelane_b32 v{self.vPROF}, s{sPF}, {self.nstamp}"); self.nstamp += 1; self.stamps.append(f"{name}@{self.a.t}")
        assert self.nstamp <= 28
    def srd(self, R, ptr, nbytes):
        b = int(R[2:].split(":")[0]); I = self.I
        I(f"s_mov_b64 {sr(b,2)}, {sr(ptr,2)}")
        I(f"s_mov_b32 s{b+2}, {nbytes}"); I(f"s_mov_b32 s{b+3}, 0x20000")
    def qpiece(self, tag, slot, srd, voff, sbase, imm, priv=False, sstride=None, pre=None, ta=17, pool=None):
        self.queue.append(dict(tag=tag, srd=srd, voff=voff, sbase=sbase, imm=imm, slot=slot, priv=priv, sstride=sstride, pre=pre, ta=ta, pool=pool))
    def qunit(self, tag, unit, srd, voff, sbase, step, extra=0, sstride=None, pre=None, ta=17):
        for i in range(7):
            self.qpiece(tag, unit * 7 + i, srd, voff, sbase, extra + i * step, sstride=sstride, pre=pre if i == 0 else None, ta=ta)
        return unit * UNIT
    def slot_ok(self, x):
        st = self.slots[x]
        return st["free"] or (st["priv"] and st["done"] is not None and self.a.lg_done >= st["done"])
    def can_issue(self):
        if self.qi >= len(self.queue): return False
        p = self.queue[self.qi]
        if p["slot"] is None: return any(self.slot_ok(x) for x in p["pool"])
        return self.slot_ok(p["slot"])
    def pump(self, n=1):
        I = self.a.I; k = 0
        while n > 0 and self.can_issue():
            p = self.queue[self.qi]; self.qi += 1; n -= 1; k += 1
            slot = p["slot"] if p["slot"] is not None else [x for x in p["pool"] if self.slot_ok(x)][0]
            self.where[p["tag"]] = slot
            if p["pre"]: p["pre"]()
            I(f"s_add_u32 m0, s{sQUART}, {slot*4096}")
            if p["sstride"] is not None:
                I(f"s_add_u32 s{p['sbase']}, s{p['sbase']}, s{p['sstride']}")
                I(f"buffer_load_dwordx4 {p['voff']}, {p['srd']}, s{p['sbase']} offen lds", p["tag"], ta=p["ta"], lat=700)
            else:
                I(f"s_add_u32 s{sPO}, s{p['sbase']}, {p['imm']}")
                I(f"buffer_load_dwordx4 {p['voff']}, {p['srd']}, s{sPO} offen lds", p["tag"], ta=p["ta"], lat=700)
            self.slots[slot] = dict(free=False, done=None, priv=p["priv"])
        return k
    def release_slots(self, slots):
        for s in slots: self.slots[s]["done"] = len(self.a.lg)
    def release(self, *unit_addrs):
        for u in unit_addrs: self.release_slots(range(u // 4096, u // 4096 + 7))
    def bar(self):
        self.I("s_barrier"); self.nbar += 1
        self.synced_vm = self.a.vm_done
        for st in self.slots:
            if not st["free"] and st["done"] is not None and self.a.lg_done >= st["done"]: st["free"] = True
    def issued(self, tag):
        return not any(p["tag"] == tag for p in self.queue[self.qi:])
    def force(self, tag):
        while not self.issued(tag):
            assert self.can_issue(), f"cannot issue pieces for {tag}"
            self.pump()
    def need(self, tags, priv=False):
        if not isinstance(tags, list): tags = [tags]
        for t in tags: self.force(t)
        if priv:
            self.a.wait(vm=tags); return
        if all(self.a._last(self.a.vm, t) < self.synced_vm for t in tags): return
        self.a.wait(vm=tags); self.bar()
    def laddr(self, pat, off):
        w = off >> 16
        if w == 0: return vr(pat), off
        if (pat, w) not in self.win:
            r = self.V.alloc(); self.win[(pat, w)] = r
            self.a.I(f"v_add_u32 v{r}, {w << 16}, v{pat}")
        return vr(self.win[(pat, w)]), off & 0xffff
    def prewin(self, pat, ws=(1, 2)):
        for w in ws: self.laddr(pat, w << 16)
    def drop_pat(self, pat):
        for k in [k for k in self.win if k[0] == pat]: self.V.free(self.win.pop(k))
        self.V.free(pat)
    def tr(self, dst, pat, off, tag):
        v, o = self.laddr(pat, off)
        self.I(f"ds_read_b64_tr_b16 {dst}, {v} offset:{o}", tag)
    def afrag(self, base, pat, off0, off1, tag, pat1=None, f=vr):
        self.tr(f(base, 2), pat, off0, tag); self.tr(f(base + 2, 2), pat if pat1 is None else pat1, off1, tag)
    def mfma(self, d, x, y, first):
        c = "0" if first else vr(d, 16)
        self.I(f"v_mfma_f32_32x32x16_bf16 {vr(d,16)}, {x}, {y}, {c}")
    def flag_store(self, stage):
        I = self.I
        I(f"s_add_u32 s{sOFF}, s{sFLAG}, {stage * 0x8000}")
        I(f"buffer_store_dword v{self.vTOK}, v{self.vFOFF}, {RWS}, s{sOFF} offen sc1", "flag", ta=4)
    def publish(self, stage, tag):
        self.a.wait(vm=tag); self.bar(); self.flag_store(stage)
    def poll_issue(self, vaddr, soff=0):
        k = self.npoll; self.npoll += 1
        t = self.V.alloc()
        self.I(f"s_mov_b32 s{sOFF}, {soff}")
        self.I(f"buffer_load_dword v{t}, v{vaddr}, {RWS}, s{sOFF} offen sc1", ("poll", k), ta=16, lat=700)
        return (k, t, vaddr, soff)
    def poll_check(self, h):
        k, t, vaddr, soff = h; I = self.I
        self.a.wait(vm=("poll", k))
        I(f"v_cmp_eq_u32 vcc, v{t}, v{self.vTOK}")
        I("s_cmp_eq_u64 vcc, -1")
        I(f"s_cbranch_scc0 L_spin{k}")
        self.a.label(f"L_pok{k}")
        self.ool.append(h)
        self.V.free(t)
    def poll(self, vaddr, soff=0): self.poll_check(self.poll_issue(vaddr, soff))
    def emit_spins(self):
        I = self.I
        for k, t, vaddr, soff in self.ool:
            self.a.label(f"L_spin{k}")
            I(f"s_mov_b32 s{sCNT}, {POLL_MAX}"); I(f"s_mov_b32 s{sOFF}, {soff}")
            self.a.label(f"L_spinl{k}")
            I(f"buffer_load_dword v{t}, v{vaddr}, {RWS}, s{sOFF} offen sc1")
            I(f"s_sub_u32 s{sCNT}, s{sCNT}, 1"); I("s_cbranch_scc1 L_abort")
            I("s_waitcnt vmcnt(0)")
            I(f"v_cmp_eq_u32 vcc, v{t}, v{self.vTOK}")
            I("s_cmp_eq_u64 vcc, -1")
            I(f"s_cbranch_scc0 L_spinl{k}")
            I(f"s_branch L_pok{k}")
        self.ool = []

    def gelu_tile(self, acc, K0, K1, out, after=None):
        I = self.I; V = self.V
        T = [V.alloc(2) for _ in range(2)]
        for p0 in range(0, 8, 2):
            prs = [p0, p0 + 1]
            U = [acc + 2 * p for p in prs]
            for k in range(2): I(f"v_pk_mul_f32 {vr(T[k],2)}, {vr(U[k],2)}, {vr(U[k],2)}")
            for k in range(2): I(f"v_pk_fma_f32 {vr(T[k],2)}, {vr(T[k],2)}, {vr(K0,2)}, {vr(K0,2)} op_sel:[0,1,0] op_sel_hi:[1,1,0]")
            for k in range(2): I(f"v_pk_mul_f32 {vr(T[k],2)}, {vr(T[k],2)}, {vr(U[k],2)}")
            for k in range(2):
                I(f"v_exp_f32 v{T[k]}, v{T[k]}"); I(f"v_exp_f32 v{T[k]+1}, v{T[k]+1}")
            for k in range(2): I(f"v_pk_fma_f32 {vr(T[k],2)}, {vr(T[k],2)}, {vr(K1,2)}, {vr(K1,2)} op_sel_hi:[1,0,0]")
            for k in range(2):
                I(f"v_rcp_f32 v{T[k]}, v{T[k]}"); I(f"v_rcp_f32 v{T[k]+1}, v{T[k]+1}")
            for k in range(2): I(f"v_pk_mul_f32 {vr(T[k],2)}, {vr(T[k],2)}, {vr(U[k],2)}")
            for k, p in enumerate(prs): I(f"v_cvt_pk_bf16_f32 v{out+p}, v{T[k]}, v{T[k]+1}")
            if after and p0 in (2, 6): after(p0 // 4)
        for t in T: V.free(t, 2)

    def gelu_consts(self, r, K0, K1):
        I = self.I
        c0 = -2.0 * math.sqrt(2.0 / math.pi) * L2E; c1 = c0 * 0.044715
        I(f"v_rcp_f32 v{K1}, v{r}")
        I(f"v_mul_f32 v{K0}, {hx(f2u(c0))}, v{r}")
        I(f"v_mul_f32 v{K0+1}, v{r}, v{r}")
        I(f"v_mul_f32 v{K0+1}, v{K0+1}, v{r}")
        I(f"v_mul_f32 v{K0+1}, {hx(f2u(c1))}, v{K0+1}")

    def feature_map(self, acc, out):
        I = self.I; V = self.V
        pk = V.alloc(8, 4)
        for p in range(8): I(f"v_cvt_pk_bf16_f32 v{pk+p}, v{acc+2*p}, v{acc+2*p+1}")
        I(f"v_and_b32 v{pk+6}, v{pk+6}, v{self.vMLO}"); I(f"v_and_b32 v{pk+7}, v{pk+7}, v{self.vMLO}")
        self.mfma(acc, ar(self.aPHI, 4), vr(pk, 4), True)
        self.tick()
        self.mfma(acc, ar(self.aPHI + 4, 4), vr(pk + 4, 4), False)
        V.free(pk, 8)
        self.tick(2)
        mm = V.alloc(2); mx, mn = mm, mm + 1
        I(f"v_max3_f32 v{mx}, v{acc}, v{acc+1}, v{acc+2}")
        I(f"v_max3_f32 v{mn}, -v{acc}, -v{acc+1}, -v{acc+2}")
        for k in range(3, 15, 2):
            I(f"v_max3_f32 v{mx}, v{mx}, v{acc+k}, v{acc+k+1}")
            I(f"v_max3_f32 v{mn}, v{mn}, -v{acc+k}, -v{acc+k+1}")
        I(f"v_max_f32_e64 v{mx}, v{mx}, v{acc+15}")
        I(f"v_max_f32_e64 v{mn}, v{mn}, -v{acc+15}")
        I(f"v_permlane32_swap_b32 v{mx}, v{mn}")
        I(f"v_max_f32 v{mx}, v{mx}, v{mn}")
        I(f"v_mul_f32 v{mx}, {hx(f2u(-L2E))}, v{mx}")
        I(f"v_mov_b32 v{mn}, v{mx}")
        I(f"v_permlane32_swap_b32 v{mx}, v{mn}")
        neg = V.alloc(16, 2)
        for p in range(8):
            I(f"v_pk_fma_f32 {vr(neg+2*p,2)}, {vr(acc+2*p,2)}, {sr(sL2E,2)}, {vr(mm,2)} op_sel:[0,0,1] op_sel_hi:[1,0,1] neg_lo:[1,0,0] neg_hi:[1,0,0]")
            I(f"v_pk_fma_f32 {vr(acc+2*p,2)}, {vr(acc+2*p,2)}, {sr(sL2E,2)}, {vr(mm,2)} op_sel_hi:[1,0,0]")
        for k in range(16):
            I(f"v_exp_f32 v{acc+k}, v{acc+k}"); I(f"v_exp_f32 v{neg+k}, v{neg+k}")
        S = [V.alloc(2), V.alloc(2)]; H = [V.alloc(2), V.alloc(2)]
        for s, b in enumerate((acc, neg)): I(f"v_pk_add_f32 {vr(S[s],2)}, {vr(b,2)}, {vr(b+2,2)}")
        for s, b in enumerate((acc, neg)): I(f"v_pk_add_f32 {vr(H[s],2)}, {vr(b+12,2)}, {vr(b+14,2)}")
        for k in range(4, 12, 2):
            for s, b in enumerate((acc, neg)): I(f"v_pk_add_f32 {vr(S[s],2)}, {vr(S[s],2)}, {vr(b+k,2)}")
        for s in range(2): I(f"v_pk_fma_f32 {vr(S[s],2)}, {vr(H[s],2)}, {vr(self.vFM,2)}, {vr(S[s],2)} op_sel_hi:[1,0,1]")
        for s in range(2): I(f"v_add_f32 v{S[s]}, v{S[s]}, v{S[s]+1}")
        I(f"v_permlane32_swap_b32 v{S[0]}, v{S[1]}")
        I(f"v_add_f32 v{S[0]}, v{S[0]}, v{S[1]}")
        I(f"v_rcp_f32 v{S[0]}, v{S[0]}")
        I(f"v_mov_b32 v{S[1]}, v{S[0]}")
        I(f"v_permlane32_swap_b32 v{S[0]}, v{S[1]}")
        for s in range(2): I(f"v_mul_f32 v{S[s]+1}, v{S[s]}, v{self.vFM}")
        for s, b in enumerate((acc, neg)):
            for p in range(8):
                sel = "op_sel:[0,1] op_sel_hi:[1,1]" if p >= 6 else "op_sel_hi:[1,0]"
                I(f"v_pk_mul_f32 {vr(b+2*p,2)}, {vr(b+2*p,2)}, {vr(S[s],2)} {sel}")
            for p in range(8): I(f"v_cvt_pk_bf16_f32 v{out+8*s+p}, v{b+2*p}, v{b+2*p+1}")
        for x in S + H: V.free(x, 2)
        V.free(neg, 16); V.free(mm, 2)

    def loop1(self, name, units, pat, acc, swap=False, bfrag=None, pre=None, hooks=None, D=3):
        ring = self.vRING; hooks = hooks or {}; au = self.auto; self.auto = False
        def rd(s):
            u = s // 14
            if s % 14 == 0: self.need(f"{name}{u}")
            base = units[u] + (s % 14) * 2048
            if pre: pre(s)
            self.afrag(ring + 4 * (s % (D + 1)), pat, base, base + 1024, (name, s))
            if s % 14 == 13: self.release(units[u])
        for s in range(D): rd(s)
        for s in range(28):
            self.a.wait(lg=(name, s))
            A = vr(ring + 4 * (s % (D + 1)), 4); B = bfrag(s) if bfrag else ar(self.aX + 4 * s, 4)
            if swap: self.mfma(acc, B, A, s == 0)
            else: self.mfma(acc, A, B, s == 0)
            if s + D < 28: rd(s + D)
            if s in hooks: hooks[s]()
            else: self.tick()
        self.auto = au

    def build(self):
        a = self.a; I = self.I; V = self.V; A = self.A; o = self.o
        a.raw(f"; @launch grid=(256,1,1) block=(256,1,1) lds={LDS_BYTES}")
        a.raw('.amdgcn_target "amdgcn-amd-amdhsa--gfx950"')
        a.raw(".text"); a.raw(f".globl {NAME}_kernel"); a.raw(".p2align 8"); a.raw(f".type {NAME}_kernel,@function")
        a.label(f"{NAME}_kernel")
        I("s_cmp_ge_u32 s2, 256"); I("s_cbranch_scc1 L_end")
        I("s_load_dwordx8 s[8:15], s[0:1], 0")
        I("s_load_dwordx8 s[16:23], s[0:1], 40")
        I("s_load_dwordx4 s[24:27], s[0:1], 72")
        I("s_load_dwordx2 s[28:29], s[0:1], 88")
        if self.prof:
            self.vPROF = V.alloc()
            I(f"s_memrealtime {sr(sPF,2)}"); I(f"s_memtime {sr(sL2E,2)}")
        vL = V.alloc(); t0 = V.alloc(); t1 = V.alloc(); t2 = V.alloc(); t3 = V.alloc()
        I(f"v_lshrrev_b32 v{t0}, 6, v0"); I(f"v_and_b32 v{vL}, 63, v0")
        I(f"v_readfirstlane_b32 s{sWAVE}, v{t0}")
        I(f"s_and_b32 s{sM}, s2, 7"); I(f"s_lshl_b32 s{sM}, s{sM}, 2"); I(f"s_lshr_b32 s{sN}, s2, 6"); I(f"s_add_u32 s{sM}, s{sM}, s{sN}")
        I(f"s_bfe_u32 s{sN}, s2, 0x30003")
        I(f"s_xor_b32 s{sRHO}, s{sM}, s{sN}"); I(f"s_and_b32 s{sRHO}, s{sRHO}, {1 if o.get('rot',1) else 0}")
        vXO = V.alloc()
        I(f"v_lshrrev_b32 v{t0}, 2, v{vL}"); I(f"v_mul_u32_u24 v{vXO}, 896, v{t0}")
        I(f"v_and_b32 v{t1}, 3, v{vL}"); I(f"v_lshl_add_u32 v{vXO}, v{t1}, 4, v{vXO}")
        I(f"s_lshl_b32 s30, s{sM}, 2"); I(f"s_add_u32 s30, s30, s{sWAVE}"); I(f"s_mul_i32 s30, s30, {16*896}")
        I(f"s_mul_i32 s31, s{sRHO}, 448"); I(f"s_add_u32 s{sOFF}, s30, s31"); I("s_add_u32 s30, s30, 448"); I("s_sub_u32 s30, s30, s31")
        I(f"s_and_b32 s{sTH}, s{sWAVE}, 1"); I(f"s_lshr_b32 s{sW2}, s{sWAVE}, 1")
        I(f"s_lshl_b32 s{sQUART}, s{sWAVE}, 10")
        self.vZ = vZ = V.alloc(); I(f"v_mov_b32 v{vZ}, 0")
        self.vTCH = vTCH = V.alloc(); self.vTD = vTD = V.alloc()
        I(f"v_lshlrev_b32 v{vTCH}, 7, v{vL}")
        I(f"s_lshl_b32 s{sCNT}, s2, 2"); I(f"s_add_u32 s{sCNT}, s{sCNT}, s{sWAVE}")
        I("s_mov_b32 s34, %d" % (2048 * 896)); I("s_mov_b32 s35, 0x20000")
        NL = o.get("cpf", 16)
        if NL:
            I("s_getpc_b64 s[36:37]")
            a.label("L_pc")
            I(f"s_lshr_b32 s38, s2, 3"); I(f"s_lshl_b32 s38, s38, 2"); I(f"s_add_u32 s38, s38, s{sWAVE}")
            I(f"s_and_b32 s38, s38, {512 // NL - 1}"); I(f"s_mul_i32 s38, s38, {NL * 128}")
            I(f"v_and_b32 v{t0}, {NL - 1}, v{vL}"); I(f"v_lshl_add_u32 v{t0}, v{t0}, 7, s38")
            I(f"v_min_u32 v{t0}, L_code_end-L_pc-4, v{t0}")
            I(f"global_load_dword v{vTD}, v{t0}, s[36:37]", "cpf", ta=2 * NL)
        I("s_waitcnt lgkmcnt(0)")
        if self.prof:
            I(f"v_writelane_b32 v{self.vPROF}, s{sPF}, 30"); I(f"v_writelane_b32 v{self.vPROF}, s{sL2E}, 28")
        I("s_mov_b64 s[32:33], s[8:9]")
        def touch(R, mul, sh, lanes):
            I(f"s_mul_i32 s{sFLAG}, s{sCNT}, {mul}"); I(f"s_lshr_b32 s{sFLAG}, s{sFLAG}, {sh}"); I(f"s_lshl_b32 s{sFLAG}, s{sFLAG}, 7")
            I(f"s_mov_b64 exec, {(1 << lanes) - 1}")
            for r in R: I(f"buffer_load_dword v{vTD}, v{vTCH}, {r}, s{sFLAG} offen", "touch", ta=2*lanes)
            I("s_mov_b64 exec, -1")
        vX = V.alloc(56, 4)
        def xload(i): I(f"buffer_load_dwordx4 {vr(vX+4*i,4)}, v{vXO}, {RX}, s{sOFF if i < 7 else 30} offen offset:{64*(i%7)}", ("x", i))
        for i in range(4): xload(i)
        self.srd(RQKV, 10, 448 * 2688); self.srd(RW1, 16, 448 * 896)
        touch([RW1], 49, 4, 4); touch([RQKV], 147, 4, 10)
        for i in range(4, 7): xload(i)
        self.srd(RWS, 28, WS_SIZE)
        vEP = V.alloc(2)
        I(f"buffer_load_dword v{vEP}, v{vZ}, {RWS}, 0 offen sc1", "epoch")
        self.srd(RPHI, 12, 25088); self.srd(RWO, 14, 448 * 896)
        self.srd(RW2, 18, 448 * 896); self.srd(RW3, 20, 448 * 3584); self.srd(RW4, 22, 1792 * 896)
        self.srd(ROUT, 24, 2048 * 896); self.srd(RDBG, 26, 256)
        I(f"s_cmp_eq_u32 s{sN}, 7")
        I("s_cselect_b32 s48, s20, s16"); I("s_cselect_b32 s49, s21, s17")
        I(f"s_cselect_b32 s50, {448*3584}, s50")
        I(f"s_cselect_b32 s{sT0}, s{sM}, s{sN}")
        I(f"s_mov_b32 s{sT1}, 896"); I(f"s_cselect_b32 s{sT1}, 3584, s{sT1}")
        I(f"s_lshl_b32 s{sW1S}, s{sT1}, 5")
        I(f"s_mul_i32 s{sW1B}, s{sT1}, s{sWAVE}"); I(f"s_lshl_b32 s{sW1B}, s{sW1B}, 3")
        I(f"s_lshl_b32 s{sT0}, s{sT0}, 7"); I(f"s_add_u32 s{sW1B}, s{sW1B}, s{sT0}"); I(f"s_sub_u32 s{sW1B}, s{sW1B}, s{sW1S}")
        I(f"s_mul_i32 s{sT2}, s{sW1S}, 7"); I(f"s_mul_i32 s{sT3}, s{sT2}, s{sRHO}")
        I(f"s_add_u32 s{sW1B2}, s{sW1B}, s{sT2}"); I(f"s_sub_u32 s{sW1B2}, s{sW1B2}, s{sT3}"); I(f"s_add_u32 s{sW1B}, s{sW1B}, s{sT3}")
        vD1 = V.alloc(); vD896 = V.alloc(); vDQ = V.alloc(); vD3 = V.alloc(); vL16 = V.alloc()
        I(f"v_lshlrev_b32 v{vL16}, 4, v{vL}")
        I(f"v_lshrrev_b32 v{t0}, 3, v{vL}")
        I(f"v_lshrrev_b32 v{t1}, 2, v{vL}"); I(f"v_and_b32 v{t1}, 4, v{t1}")
        I(f"v_and_b32 v{t2}, 7, v{vL}"); I(f"v_xor_b32 v{t2}, v{t2}, v{t1}")
        I(f"v_lshlrev_b32 v{t3}, 4, v{t2}")
        I(f"v_mad_u32_u24 v{vD1}, v{t0}, s{sT1}, v{t3}")
        I(f"v_mul_u32_u24 v{vD896}, 896, v{t0}"); I(f"v_add_u32 v{vD896}, v{vD896}, v{t3}")
        I(f"s_mul_i32 s{sT0}, s{sN}, 112")
        I(f"s_mul_i32 s{sKA}, s{sWAVE}, {8*2688}"); I(f"s_add_u32 s{sKA}, s{sKA}, s{sT0}")
        I(f"s_mul_i32 s{sT3}, s{sRHO}, {224*2688}")
        I(f"s_add_u32 s{sKB}, s{sKA}, {224*2688}"); I(f"s_sub_u32 s{sKB}, s{sKB}, s{sT3}"); I(f"s_add_u32 s{sKA}, s{sKA}, s{sT3}")
        I(f"v_cmp_eq_u32 vcc, 7, v{t2}")
        I(f"v_mul_u32_u24 v{vDQ}, 2688, v{t0}"); I(f"v_add_u32 v{vDQ}, v{vDQ}, v{t3}"); I(f"v_mov_b32 v{t1}, {hx(OOB)}")
        I(f"v_cndmask_b32 v{vDQ}, v{vDQ}, v{t1}, vcc")
        for i in range(7, 14): xload(i)
        if o.get("tlb", 1):
            I(f"v_lshlrev_b32 v{t1}, 19, v{vL}"); I(f"s_lshl_b32 s{sT0}, s{sCNT}, 7")
            I(f"buffer_load_dword v{vTD}, v{t1}, {RWS}, s{sT0} offen", "touch", ta=84)
            I(f"buffer_load_dword v{vTD}, v{t1}, {ROUT}, s{sT0} offen", "touch", ta=8)
        V.free(vXO)
        I(f"s_add_u32 m0, s{sQUART}, {L_PK}")
        I(f"s_mul_i32 s{sT0}, s{sN}, 3136"); I(f"s_add_u32 s{sT0}, s{sT0}, s{sQUART}")
        I(f"buffer_load_dwordx4 v{vL16}, {RPHI}, s{sT0} offen lds", "phi")
        I(f"s_lshl_b32 s{sT0}, s{sN}, 7")
        I(f"s_mul_i32 s{sW2A}, s{sWAVE}, {8*896}"); I(f"s_add_u32 s{sW2A}, s{sW2A}, s{sT0}")
        I(f"s_mul_i32 s{sT3}, s{sRHO}, {224*896}")
        I(f"s_add_u32 s{sW2B}, s{sW2A}, {224*896}"); I(f"s_sub_u32 s{sW2B}, s{sW2B}, s{sT3}"); I(f"s_add_u32 s{sW2A}, s{sW2A}, s{sT3}")
        I(f"s_lshr_b32 s{sP}, s{sM}, 1"); I(f"s_and_b32 s{sJ}, s{sM}, 1"); I(f"s_mul_i32 s{sJ}, s{sJ}, 7"); I(f"s_add_u32 s{sJ}, s{sJ}, s{sN}")
        I(f"s_lshl_b32 s{sR4}, s{sP}, 1"); I(f"s_add_u32 s{sR4}, s{sR4}, s{sJ}"); I(f"s_and_b32 s{sR4}, s{sR4}, {3 if o.get('rot',1) else 0}")
        I(f"s_and_b32 s{sR7}, s{sM}, 3"); I(f"s_lshl_b32 s{sR7}, s{sR7}, 1"); I(f"s_add_u32 s{sR7}, s{sR7}, s{sN}")
        I(f"s_cmp_ge_u32 s{sR7}, 7"); I(f"s_cselect_b32 s{sT1}, 7, 0"); I(f"s_sub_u32 s{sR7}, s{sR7}, s{sT1}")
        if not o.get('rot', 1): I(f"s_mov_b32 s{sR7}, 0")
        G4 = 64 * 896; G3 = 112 * 3584
        I(f"s_mul_i32 s{sW4}, s{sWAVE}, {448*896}"); I(f"s_add_u32 s{sW4}, s{sW4}, s{sT0}"); I(f"s_add_u32 s{sW4L}, s{sW4}, {7*G4}")
        I(f"s_mul_i32 s{sT1}, s{sR7}, {G4}"); I(f"s_add_u32 s{sW4}, s{sW4}, s{sT1}")
        I(f"s_lshl_b32 s{sT0}, s{sJ}, 8"); I(f"s_mul_i32 s{sW3}, s{sWAVE}, {4*3584}"); I(f"s_add_u32 s{sW3}, s{sW3}, s{sT0}"); I(f"s_add_u32 s{sW3L}, s{sW3}, {4*G3}")
        I(f"s_mul_i32 s{sT1}, s{sR4}, {G3}"); I(f"s_add_u32 s{sW3}, s{sW3}, s{sT1}")
        I(f"s_lshl_b32 s{sTT}, s{sM}, 1"); I(f"s_add_u32 s{sTT}, s{sTT}, s{sTH}")
        I(f"s_lshl_b32 s{sHD}, s{sN}, 1"); I(f"s_add_u32 s{sHD}, s{sHD}, s{sW2}")
        I(f"v_lshrrev_b32 v{t0}, 4, v{vL}"); I(f"v_lshlrev_b32 v{t1}, 2, v{t0}")
        I(f"v_and_b32 v{t2}, 15, v{vL}"); I(f"v_xor_b32 v{t2}, v{t2}, v{t1}"); I(f"v_lshlrev_b32 v{t2}, 4, v{t2}")
        I(f"v_mul_u32_u24 v{vD3}, 3584, v{t0}"); I(f"v_add_u32 v{vD3}, v{vD3}, v{t2}")
        def adv(s, lim, g, n):
            def f():
                I(f"s_add_u32 s{s}, s{s}, {g}"); I(f"s_cmp_eq_u32 s{s}, s{lim}"); I(f"s_cselect_b32 s{sPO}, {n*g}, 0"); I(f"s_sub_u32 s{s}, s{s}, s{sPO}")
            return f
        for s_ in range(14): self.slots[s_] = dict(free=False, done=None, priv=False)
        XN = [0, UNIT]
        W1 = [self.qunit("w10", 2, RW1, vr(vD1), sW1B, 0, sstride=sW1S), self.qunit("w11", 3, RW1, vr(vD1), sW1B2, 0, sstride=sW1S)]
        qs = 32 * 2688
        QT = 33
        WK = [self.qunit("wk0", 4, RQKV, vr(vDQ), sKA, qs, 896, ta=QT), self.qunit("wk1", 2, RQKV, vr(vDQ), sKB, qs, 896, ta=QT)]
        WV = [self.qunit("wv0", 0, RQKV, vr(vDQ), sKA, qs, 1792, ta=QT), self.qunit("wv1", 1, RQKV, vr(vDQ), sKB, qs, 1792, ta=QT)]
        W2 = [self.qunit("w20", 3, RW2, vr(vD896), sW2A, 32 * 896), self.qunit("w21", 4, RW2, vr(vD896), sW2B, 32 * 896)]
        WQ = [self.qunit("wq0", 2, RQKV, vr(vDQ), sKA, qs, ta=QT), self.qunit("wq1", 0, RQKV, vr(vDQ), sKB, qs, ta=QT)]
        W3 = [self.qunit(f"w3{u}", un, RW3, vr(vD3), sW3, 16 * 3584, pre=adv(sW3, sW3L, G3, 4) if u else None) for u, un in enumerate((1, 3, 4, 2))]
        pool4 = list(range(0, 14)) + list(range(21, 28))
        NREG = 18
        for i in range(56):
            self.qpiece(("w4", i), None, RW4, vr(vD896), sW4, (i % 8) * 8 * 896, priv=True, pool=pool4, pre=adv(sW4, sW4L, G4, 7) if (i % 8 == 0 and i) else None)
        WO = [self.qunit("wo0", 4, RWO, vr(vD896), sW2A, 32 * 896), self.qunit("wo1", 2, RWO, vr(vD896), sW2B, 32 * 896)]
        I(f"s_lshr_b32 s{sLW}, s2, 3"); I(f"s_lshl_b32 s{sLW}, s{sLW}, 2"); I(f"s_add_u32 s{sLW}, s{sLW}, s{sWAVE}"); I(f"s_mul_i32 s{sLW}, s{sLW}, {98*128}")
        I(f"s_mov_b32 s{sM33}, -1"); I(f"s_mov_b32 s{sM33+1}, 1")
        self.vTOK = V.alloc(); self.vFOFF = V.alloc(); self.vFM = V.alloc(2); self.vMLO = V.alloc()
        I(f"s_mov_b32 s{sUP}, 0"); I(f"s_mov_b32 s{sUP+1}, -1")
        I(f"s_mov_b32 s{sL28}, 0x10000000"); I(f"s_mov_b32 s{sL28+1}, 0x10000000")
        I(f"s_mov_b32 s{sL2E}, {hx(f2u(L2E))}"); I(f"s_mov_b32 s{sL2E+1}, s{sL2E}")
        I(f"v_cndmask_b32 v{self.vFM}, 1.0, 0, {sr(sUP,2)}"); I(f"v_cndmask_b32 v{self.vMLO}, -1, 0, {sr(sUP,2)}")
        I(f"v_mov_b32 v{self.vFM+1}, 0")
        I(f"v_mov_b32 v{t0}, {hx(OOB)}"); I(f"v_cmp_eq_u32 vcc, 0, v0"); I(f"v_cndmask_b32 v{self.vFOFF}, v{t0}, v{vZ}, vcc")
        vPW = V.alloc(); vPW2 = V.alloc(); vPQ = V.alloc(); vRC = V.alloc(); vROW = V.alloc(); vT31 = V.alloc()
        I(f"v_and_b32 v{vT31}, 31, v{vL}")
        I(f"v_bfe_u32 v{t0}, v{vL}, 2, 2")
        I(f"v_lshrrev_b32 v{t1}, 5, v{vL}"); I(f"v_lshl_add_u32 v{vROW}, v{t1}, 2, v{t0}")
        I(f"v_and_b32 v{t2}, 3, v{vL}"); I(f"v_lshlrev_b32 v{t2}, 3, v{t2}")
        I(f"v_bfe_u32 v{t3}, v{vL}, 4, 1"); I(f"v_lshl_add_u32 v{vRC}, v{t3}, 5, v{t2}")
        I(f"v_lshrrev_b32 v{t0}, 1, v{t0}"); I(f"v_lshlrev_b32 v{t0}, 6, v{t0}")
        I(f"s_lshl_b32 s{sT0}, s{sW2}, 6")
        I(f"v_add_u32 v{t1}, s{sT0}, v{vRC}"); I(f"v_xor_b32 v{t1}, v{t1}, v{t0}"); I(f"v_lshl_add_u32 v{vPW}, v{vROW}, 7, v{t1}")
        I(f"v_xor_b32 v{vPW2}, 64, v{vPW}")
        I(f"s_mul_i32 s{sT0}, s{sW2}, 56")
        I(f"v_add_u32 v{t1}, s{sT0}, v{vRC}"); I(f"v_xor_b32 v{t1}, v{t1}, v{t0}"); I(f"v_lshl_add_u32 v{vPQ}, v{vROW}, 7, v{t1}")
        self.prewin(vPW, (1,)); self.prewin(vPQ)
        vSA = V.alloc(2); vKM = V.alloc(2)
        for u in range(2):
            I(f"s_lshl_b32 s{sT0}, s{sHD}, 1"); I(f"s_add_u32 s{sT0}, s{sT0}, {u}")
            I(f"s_mul_i32 s{sT1}, s{sT0}, 37"); I(f"s_lshr_b32 s{sT1}, s{sT1}, 8")
            I(f"s_lshr_b32 s{sT2}, s{sT1}, 1"); I(f"s_add_u32 s{sT2}, s{sT2}, 1")
            I(f"s_sub_u32 s{sT3}, 0, s{sT2}"); I(f"s_bitcmp1_b32 s{sT1}, 0"); I(f"s_cselect_b32 s{sT2}, s{sT3}, s{sT2}")
            I(f"s_lshl_b32 s{sT1}, s{sTT}, 5"); I(f"s_add_u32 s{sT1}, s{sT1}, s{sT2}")
            I(f"v_add_u32 v{t0}, s{sT1}, v{vT31}")
            I(f"v_cmp_gt_u32 vcc, 0x800, v{t0}")
            I(f"v_bfe_u32 v{t3}, v{t0}, 5, 6"); I(f"v_mul_u32_u24 v{t3}, 28672, v{t3}")
            I(f"v_cndmask_b32 v{vKM+u}, 0, -1, vcc")
            I(f"v_and_b32 v{t0}, 31, v{t0}"); I(f"v_and_or_b32 v{t0}, v{vL}, 32, v{t0}"); I(f"v_lshl_add_u32 v{t3}, v{t0}, 4, v{t3}")
            I(f"s_lshl_b32 s{sT0}, s{sT0}, 10"); I(f"s_add_u32 s{sT0}, s{sT0}, {WS_HS}")
            I(f"v_add_u32 v{vSA+u}, s{sT0}, v{t3}")
        vR2W = V.alloc(); vXW = V.alloc(); vBE = V.alloc(); vBO = V.alloc()
        I(f"v_and_b32 v{t0}, 60, v{vL}"); I(f"s_lshl_b32 s{sT0}, s{sWAVE}, 6"); I(f"s_add_u32 s{sT0}, s{sT0}, {L_R2}")
        I(f"v_add_u32 v{vR2W}, s{sT0}, v{t0}")
        I(f"v_lshrrev_b32 v{t0}, 2, v{vL}"); I(f"s_lshl_b32 s{sT0}, s{sTH}, 4"); I(f"v_add_u32 v{t0}, s{sT0}, v{t0}")
        I(f"v_bfe_u32 v{t1}, v{vL}, 1, 1")
        I(f"v_lshlrev_b32 v{t2}, 2, v{t1}"); I(f"v_xor_b32 v{t0}, v{t0}, v{t2}"); I(f"v_lshlrev_b32 v{t0}, 4, v{t0}")
        I(f"v_lshl_add_u32 v{t0}, v{t1}, 10, v{t0}")
        I(f"v_and_b32 v{t1}, 1, v{vL}"); I(f"v_lshl_add_u32 v{t0}, v{t1}, 3, v{t0}")
        I(f"s_mul_i32 s{sT0}, s{sW2}, {UNIT}"); I(f"v_add_u32 v{vXW}, s{sT0}, v{t0}")
        I(f"s_mul_i32 s{sT0}, s{sTH}, {UNIT}"); I(f"v_add_u32 v{vBE}, s{sT0}, v{vL16}"); I(f"v_xor_b32 v{vBO}, 64, v{vBE}")
        vRA = V.alloc(2); vR2 = V.alloc(); vPH = V.alloc(2)
        I(f"s_mul_i32 s{sT0}, s{sRHO}, 7"); I(f"s_add_u32 s{sT0}, s{sT0}, s{sHD}")
        I(f"s_cmp_ge_u32 s{sT0}, 14"); I(f"s_cselect_b32 s{sT1}, 14, 0"); I(f"s_sub_u32 s{sT0}, s{sT0}, s{sT1}"); I(f"s_lshl_b32 s{sT0}, s{sT0}, 11")
        I(f"v_add_u32 v{vRA}, s{sT0}, v{vBE}"); I(f"v_add_u32 v{vRA+1}, s{sT0}, v{vBO}")
        I(f"s_lshl_b32 s{sT0}, s{sTH}, 7"); I(f"s_add_u32 s{sT0}, s{sT0}, {L_R2}")
        I(f"v_lshl_add_u32 v{vR2}, v{vT31}, 2, s{sT0}")
        I(f"v_min_u32 v{t0}, 48, v{vRC}")
        I(f"s_mul_i32 s{sT0}, s{sW2}, 1568"); I(f"s_add_u32 s{sT0}, s{sT0}, {L_PK}")
        I(f"v_add_u32 v{t0}, s{sT0}, v{t0}")
        I(f"v_and_b32 v{t1}, 3, v{vROW}"); I(f"v_mul_u32_u24 v{t1}, 56, v{t1}"); I(f"v_add_u32 v{vPH+1}, v{t1}, v{t0}")
        I(f"v_mul_u32_u24 v{t2}, 56, v{vROW}"); I(f"v_add_u32 v{vPH}, v{t2}, v{t0}")
        st = V.alloc(4, 2)
        for k in range(4): I(f"v_mov_b32 v{st+k}, 0")
        vONE = V.alloc(4, 4)
        for k in range(4): I(f"v_mov_b32 v{vONE+k}, 0x3f803f80")
        self.stamp("pro")
        for i in range(14):
            a.wait(vm=("x", i))
            for k in range(4):
                d = vX + 4 * i + k; oo = 2 * (k & 1)
                I(f"v_dot2c_f32_bf16 v{st+oo}, v{d}, v{vONE}")
                I(f"v_dot2c_f32_bf16 v{st+oo+1}, v{d}, v{d}")
            if i == 7:
                I(f"s_mov_b32 s{sT1}, 1664525")
                I(f"v_mul_lo_u32 v{vEP}, v{vEP}, s{sT1}"); I(f"v_add_u32 v{vEP}, 1013904223, v{vEP}"); I(f"v_mov_b32 v{vEP+1}, 1")
                I(f"s_cmp_eq_u32 s2, 0"); I(f"s_cselect_b32 s{sT0}, 0, {hx(0x7f000000)}")
                I(f"buffer_store_dwordx2 {vr(vEP,2)}, v{self.vFOFF}, {RDBG}, s{sT0} offen sc1", "tokst", ta=4)
                I(f"buffer_store_dword v{vEP}, v{self.vFOFF}, {RWS}, s{sT0} offen sc1", "tokst", ta=4)
            self.pump(1)
        I(f"v_pk_add_f32 {vr(st,2)}, {vr(st,2)}, {vr(st+2,2)}")
        for qp in ("[1,0,3,2]", "[2,3,0,1]"):
            for k in range(2): I(f"v_add_f32_dpp v{st+k}, v{st+k}, v{st+k} quad_perm:{qp} row_mask:0xf bank_mask:0xf")
        I(f"v_mul_f32 v{st}, {hx(f2u(1/448))}, v{st}")
        I(f"v_mul_f32 v{st+1}, {hx(f2u(1/448))}, v{st+1}")
        I(f"v_fma_f32 v{st+1}, -v{st}, v{st}, v{st+1}")
        I(f"v_max_f32 v{st+1}, 0, v{st+1}")
        I(f"v_add_f32 v{st+2}, {hx(f2u(1e-5))}, v{st+1}")
        I(f"v_rsq_f32 v{st+2}, v{st+2}")
        tp = [V.alloc(2), V.alloc(2)]
        I(f"v_mul_f32_e64 v{st+3}, -v{st}, v{st+2}")
        self.stamp("stats")
        self.auto = bool(o.get("autonorm", 1))
        for i in range(14):
            for k0 in (0, 2):
                for k in range(2): I(f"v_lshlrev_b32 v{tp[k]}, 16, v{vX+4*i+k0+k}")
                for k in range(2): I(f"v_and_b32 v{tp[k]+1}, 0xffff0000, v{vX+4*i+k0+k}")
                for k in range(2):
                    I(f"v_pk_fma_f32 {vr(tp[k],2)}, {vr(tp[k],2)}, {vr(st+2,2)}, {vr(st+2,2)} op_sel:[0,0,1] op_sel_hi:[1,0,1]")
                for k in range(2): I(f"v_cvt_pk_bf16_f32 v{vX+4*i+k0+k}, v{tp[k]}, v{tp[k]+1}")
            I(f"ds_write2st64_b64 v{vXW}, {vr(vX+4*i,2)}, {vr(vX+4*i+2,2)} offset0:{4*i} offset1:{4*i+1}", "xnw")
        I(f"v_mul_f32 v{st+1}, v{st+1}, v{st+2}"); I(f"v_mul_f32 v{st+1}, v{st+1}, v{st+2}")
        I(f"v_add_f32 v{st+1}, {hx(f2u(1e-5))}, v{st+1}")
        I(f"v_rsq_f32 v{st+1}, v{st+1}")
        I("s_nop 0")
        I(f"ds_write_b32 v{vR2W}, v{st+1}", "xnw")
        for x in tp: V.free(x, 2)
        V.free(st, 4); V.free(vR2W); V.free(vXW)
        self.stamp("norm0")
        self.auto = True
        a.wait(lg="xnw", vm=["w11", "phi"]); self.bar()
        V.free(vX, 56); V.free(vEP, 2)
        self.stamp("norm")
        self.aX = aX = 0; self.aPHI = 112; aH = 144; aW4 = 0; aB = 144
        self.vRING = R = V.alloc(32, 4)
        vRES = V.alloc(8, 4); acc = V.alloc(16, 4); vTK2 = V.alloc(2)
        K0 = V.alloc(2); K1 = V.alloc(2); outp = V.alloc(8, 4)
        def xpre(s): I(f"ds_read_b128 {ar(aX+4*s,4)}, v{vBO if s & 1 else vBE} offset:{s*1024}", ("w1", s))
        def h_misc():
            I(f"ds_read_b128 {vr(vRES,4)}, v{vRA}", "res"); I(f"ds_read_b128 {vr(vRES+4,4)}, v{vRA+1} offset:1024", "res")
            I(f"ds_read_b32 v{vR2}, v{vR2}", "res")
        def h_phi():
            self.afrag(self.aPHI, vPH, 0, 8 * 56, "res", f=ar); self.afrag(self.aPHI + 4, vPH, 16 * 56, 24 * 56, "res", pat1=vPH + 1, f=ar)
        def h_tok(): I(f"buffer_load_dwordx2 {vr(vTK2,2)}, v{vZ}, {RDBG}, 0 offen sc1", "tok", ta=4)
        def h_touch2():
            touch([RW2, RWO], 49, 4, 4); touch([RW3, RW4], 49, 2, 13)
            I(f"s_lshl_b32 s{sFLAG}, s{sM}, 3"); I(f"s_add_u32 s{sFLAG}, s{sFLAG}, s{sN}"); I(f"s_lshl_b32 s{sFLAG}, s{sFLAG}, 7"); I(f"s_add_u32 s{sFLAG}, s{sFLAG}, {WS_FLAG}")
        hk1 = {14: self.bar, 25: h_misc, 26: h_phi, 24: h_tok, 27: lambda: None}
        I(f"s_cmp_eq_u32 s{sN}, 7"); I("s_cbranch_scc1 L_s1_spare")
        snap = self.snapshot()
        self.loop1("w1", W1, vPW, acc, pre=xpre, hooks=hk1)
        self.release(*XN); a.wait(lg="res"); self.bar()
        self.stamp("s1loop")
        self.gelu_consts(vR2, K0, K1)
        def hs_store(u):
            for k in range(4): I(f"v_and_b32 v{outp+4*u+k}, v{outp+4*u+k}, v{vKM+u}")
            I(f"buffer_store_dwordx4 {vr(outp+4*u,4)}, v{vSA+u}, {RWS}, 0 offen sc1", "hs", **ST)
        self.gelu_tile(acc, K0, K1, outp, after=hs_store)
        spare_out = outp
        V.free(K0, 2); V.free(K1, 2); V.free(outp, 8); V.free(vSA, 2); V.free(vKM, 2); V.free(vR2); V.free(vRA, 2); V.free(vPH, 2); V.free(vBE); V.free(vBO)
        spare1 = (snap, self.qi)
        a.label("L_s1_join")
        self.stamp("s1epi")
        if o.get("pf", 0): self.pf = [(R_, k) for R_ in (RW3, RW4) for k in range(3)]; self.pf_next = a.t + o.get("pf0", 600)
        def h_tokchk():
            a.wait(vm="tok")
            I(f"v_readfirstlane_b32 s{sT0}, v{vTK2+1}")
            I(f"s_cmp_eq_u32 s{sT0}, 0"); I("s_cbranch_scc1 L_tok_retry")
            a.label("L_tok_ok")
            I(f"v_mov_b32 v{self.vTOK}, v{vTK2}")
        vPA = V.alloc(); vPG = V.alloc(); vEW = V.alloc(); vER = V.alloc(); vER2 = V.alloc(); vKW = V.alloc(); vKR = V.alloc(2)
        def seq(lst, first, step=1, per=3):
            hk = {}
            for i in range(0, len(lst), per):
                hk[first + step * (i // per)] = (lambda ch: lambda: [I(x) for x in ch])(lst[i:i + per])
            return hk
        hk = seq([f"v_lshrrev_b32 v{t0}, 3, v{vL}", f"v_min_u32 v{t0}, 2, v{t0}", f"s_add_u32 s{sT0}, s{sM}, 31",
                  f"v_add_u32 v{t0}, s{sT0}, v{t0}", f"v_and_b32 v{t0}, 31, v{t0}", f"v_and_b32 v{t1}, 7, v{vL}",
                  f"v_min_u32 v{t1}, 6, v{t1}", f"v_lshl_add_u32 v{t0}, v{t0}, 3, v{t1}", f"v_and_b32 v{t2}, 1, v{vL}",
                  f"s_lshl_b32 s{sT0}, s{sJ}, 1", f"v_add_u32 v{t2}, s{sT0}, v{t2}", f"v_lshl_or_b32 v{t2}, v{t2}, 3, 7",
                  f"v_cndmask_b32 v{t0}, v{t0}, v{t2}, {sr(sUP,2)}", f"v_lshlrev_b32 v{vPA}, 7, v{t0}", f"v_bfe_u32 v{t0}, v{vL}, 3, 1",
                  f"s_lshl_b32 s{sT0}, s{sP}, 1", f"v_add_u32 v{t0}, s{sT0}, v{t0}", f"v_lshl_add_u32 v{t0}, v{t0}, 3, v{t1}",
                  f"v_lshlrev_b32 v{vPG}, 7, v{t0}", f"s_mul_i32 s{sT0}, s{sWAVE}, 4608", f"s_add_u32 s{sT0}, s{sT0}, {L_PK}",
                  f"v_mul_u32_u24 v{t0}, 144, v{vT31}", f"v_and_b32 v{t1}, 32, v{vL}", f"v_add3_u32 v{vKW}, v{t0}, v{t1}, s{sT0}",
                  ], 5, 2)
        hk.update({1: h_touch2, 3: h_tokchk, o.get("pub1", 24): lambda: self.publish(1, "hs")})
        self.loop1("wk", WK, vPQ, acc, hooks=hk)
        self.stamp("kloop")
        phi = V.alloc(16, 4); accv = V.alloc(16, 4)
        I(f"v_bfe_u32 v{t1}, v{vRC}, 3, 1"); I(f"v_lshlrev_b32 v{t1}, 5, v{t1}")
        I(f"v_lshrrev_b32 v{t2}, 4, v{vRC}"); I(f"v_lshl_add_u32 v{t1}, v{t2}, 3, v{t1}")
        I(f"v_mul_u32_u24 v{t2}, 144, v{vROW}"); I(f"v_add3_u32 v{t1}, v{t1}, v{t2}, s{sT0}")
        I(f"v_add_u32 v{vEW}, s{sT0}, v{vL16}")
        self.feature_map(acc, phi)
        for s in range(2):
            for e in range(2):
                I(f"ds_write_b128 v{vKW}, {vr(phi+8*s+4*e,4)} offset:{64*s+16*e}", "pkw")
        self.stamp("ksm")
        hp = {}
        def h_p1(): hp["h1"] = self.poll_issue(vPA, WS_FLAG + 1 * 0x8000)
        def h_pk(j):
            def f():
                for u in range(2): self.afrag(R + 16 + 8 * j + 4 * u, vKR + j, 16 * u * 144, (16 * u + 8) * 144, ("pkr", j, u))
            return f
        hk = seq([f"s_lshl_b32 s{sT1}, s{sTH}, 6", f"v_add_u32 v{vKR+1}, s{sT1}, v{t1}", f"s_xor_b32 s{sT1}, s{sT1}, 64",
                  f"v_add_u32 v{vKR}, s{sT1}, v{t1}", f"s_xor_b32 s{sT1}, s{sWAVE}, 1", f"s_mul_i32 s{sT1}, s{sT1}, 4608",
                  f"s_add_u32 s{sT1}, s{sT1}, {L_PK}", f"v_add_u32 v{vER}, s{sT1}, v{vL16}", f"s_xor_b32 s{sT1}, s{sWAVE}, 2",
                  f"s_mul_i32 s{sT1}, s{sT1}, 4608", f"s_add_u32 s{sT1}, s{sT1}, {L_PK}", f"v_add_u32 v{vER2}, s{sT1}, v{vL16}",
                  f"s_lshl_b32 s{sG0}, s{sM}, 4", f"s_add_u32 s{sG0}, s{sG0}, s{sHD}", f"s_lshl_b32 s{sG0}, s{sG0}, 1",
                  f"s_add_u32 s{sG0}, s{sG0}, s{sTH}", f"s_lshl_b32 s{sG0}, s{sG0}, 12", f"s_add_u32 s{sG0}, s{sG0}, {WS_KVP}",
                  f"s_lshl_b32 s{sG1}, s{sTT}, 1", f"s_add_u32 s{sG1}, s{sG1}, s{sW2}", f"s_mul_i32 s{sG1}, s{sG1}, 14336",
                  f"s_add_u32 s{sG1}, s{sG1}, {WS_HS}"], 1, 2)
        hk.update({o.get("poll1", 6): h_p1, 25: h_pk(0), 26: h_pk(1), 27: lambda: None})
        self.loop1("wv", WV, vPQ, accv, swap=True, hooks=hk)
        self.stamp("vloop")
        I(f"s_cmp_eq_u32 s{sN}, 7"); I("s_cbranch_scc1 L_kv_nohs")
        self.auto = False; q0 = self.qi
        self.poll_check(hp["h1"])
        for s in range(14):
            if s % 4 == 0 and s: I(f"s_add_u32 s{sG1}, s{sG1}, 4096")
            I(f"buffer_load_dwordx4 {ar(aH+4*s,4)}, v{vL16}, {RWS}, s{sG1} offen offset:{(s%4)*1024} sc1", ("hsl", s), lat=800)
        a.label("L_kv_join")
        assert q0 == self.qi; self.auto = True
        self.stamp("hsld")
        vp = V.alloc(8, 4)
        for p in range(8): I(f"v_cvt_pk_bf16_f32 v{vp+p}, v{accv+2*p}, v{accv+2*p+1}")
        for p in range(8): I(f"v_cndmask_b32 v{vp+p}, v{vp+p}, v{vONE}, {sr(sL28,2)}")
        for j, ac in enumerate((accv, acc)):
            for u in range(2):
                a.wait(lg=("pkr", j, u))
                self.mfma(ac, vr(R + 16 + 8 * j + 4 * u, 4), vr(vp + 4 * u, 4), u == 0)
        V.free(vp, 8); V.free(vKW); V.free(vKR, 2)
        self.force("w21")
        for k in range(4): I(f"ds_write_b128 v{vEW}, {vr(accv+4*k,4)} offset:{1024*k}", "exw")
        a.wait(lg="exw", vm=["w20", "w21"]); self.bar()
        for k in range(4): I(f"ds_read_b128 {vr(accv+4*k,4)}, v{vER} offset:{1024*k}", ("exr", k))
        for k in range(4):
            a.wait(lg=("exr", k))
            for e in range(2): I(f"v_pk_add_f32 {vr(acc+4*k+2*e,2)}, {vr(acc+4*k+2*e,2)}, {vr(accv+4*k+2*e,2)}")
            I(f"buffer_store_dwordx4 {vr(acc+4*k,4)}, v{vL16}, {RWS}, s{sG0} offen offset:{1024*k} sc1", "kvp", **ST)
        V.free(vER)
        self.stamp("kv")
        snap3 = self.snapshot()
        I(f"s_cmp_eq_u32 s{sN}, 7"); I("s_cbranch_scc1 L_s3_skip")
        def two_tile_loop(name, nst, U, rowoff, bfrag, btag, ackeep, acsend, last_alt=None, hooks=None, hooks2=None):
            hooks = hooks or {}; hooks2 = hooks2 or {}; au = self.auto; self.auto = False
            pk = V.alloc(); ps = V.alloc()
            I(f"s_cmp_eq_u32 s{sW2}, s{sRHO}"); I(f"s_mov_b32 s{sT1}, {U[1]}"); I(f"s_cselect_b32 s{sT1}, {U[0]}, s{sT1}")
            I(f"v_add_u32 v{pk}, s{sT1}, v{vPW}"); I(f"v_add_u32 v{ps}, s{sT1}, v{vPW2}")
            if last_alt:
                pk1 = V.alloc(); ps1 = V.alloc()
                I(f"v_and_b32 v{pk1}, 32, v{vL}"); I(f"v_lshlrev_b32 v{pk1}, 4, v{pk1}")
                I(f"v_sub_u32 v{ps1}, v{ps}, v{pk1}"); I(f"v_sub_u32 v{pk1}, v{pk}, v{pk1}")
            self.need([f"{name}0", f"{name}1"])
            D = 2
            def rd(s, j):
                b = rowoff(s) * 128; alt = last_alt and last_alt(s)
                if j == 0: self.afrag(R + 8 * (s % 3), pk, b, b + 1024, (name, s, 0), pat1=pk1 if alt else None)
                else: self.afrag(R + 8 * (s % 3) + 4, ps, b, b + 1024, (name, s, 1), pat1=ps1 if alt else None)
            for s in range(D): rd(s, 0); rd(s, 1)
            for s in range(nst):
                a.wait(lg=(name, s, 1), vm=(btag, s))
                self.mfma(ackeep, vr(R + 8 * (s % 3), 4), bfrag(s), s == 0)
                if s + D < nst: rd(s + D, 0)
                if s in hooks: hooks[s]()
                else: self.tick()
                self.mfma(acsend, vr(R + 8 * (s % 3) + 4, 4), bfrag(s), s == 0)
                if s + D < nst: rd(s + D, 1)
                if s in hooks2: hooks2[s]()
            self.release(*U)
            V.free(pk); V.free(ps)
            if last_alt: V.free(pk1); V.free(ps1)
            self.auto = au
        acc3 = V.alloc(16, 4); vX1 = V.alloc(16, 4); x1p = V.alloc(8, 4); ss = V.alloc(4, 2)
        un = []
        for p in range(8): un += [f"v_lshlrev_b32 v{vX1+2*p}, 16, v{vRES+p}", f"v_and_b32 v{vX1+2*p+1}, 0xffff0000, v{vRES+p}"]
        un += [f"v_mov_b32 v{ss+k}, 0" for k in range(4)]
        un += [f"s_mul_i32 s{sT0}, s{sTT}, 14", f"s_add_u32 s{sT0}, s{sT0}, s{sHD}", f"s_lshl_b32 s{sT2}, s{sT0}, 11", f"s_add_u32 s{sT2}, s{sT2}, {WS_X1}",
               f"s_lshl_b32 s{sT3}, s{sT0}, 8", f"s_add_u32 s{sT3}, s{sT3}, {WS_ST}",
               f"v_lshlrev_b32 v{t0}, 3, v{vL}", f"v_mov_b32 v{t1}, {hx(OOB)}", f"v_cndmask_b32 v{t0}, v{t0}, v{t1}, {sr(sUP,2)}"]
        two_tile_loop("w2", 14, W2, lambda s: 16 * s, lambda s: ar(aH + 4 * s, 4), "hsl", acc3, accv, hooks={11: lambda: self.publish(2, "kvp")}, hooks2=seq(un, 0))
        self.stamp("s3loop")
        self.auto = False
        for k in range(4): I(f"ds_write_b128 v{vEW}, {vr(accv+4*k,4)} offset:{1024*k}", "exw")
        for p in range(8): I(f"v_pk_add_f32 {vr(acc3+2*p,2)}, {vr(acc3+2*p,2)}, {vr(vX1+2*p,2)}")
        a.wait(lg="exw"); self.bar()
        for k in range(4): I(f"ds_read_b128 {vr(accv+4*k,4)}, v{vER2} offset:{1024*k}", ("exr", k))
        for k in range(4):
            a.wait(lg=("exr", k))
            for e in range(2): I(f"v_pk_add_f32 {vr(acc3+4*k+2*e,2)}, {vr(acc3+4*k+2*e,2)}, {vr(accv+4*k+2*e,2)}")
            for e in range(2): I(f"v_cvt_pk_bf16_f32 v{x1p+2*k+e}, v{acc3+4*k+2*e}, v{acc3+4*k+2*e+1}")
            if k & 1: I(f"buffer_store_dwordx4 {vr(x1p+2*k-2,4)}, v{vL16}, {RWS}, s{sT2} offen offset:{1024*(k>>1)} sc1", "x1", **ST)
        for p in range(8):
            oo = 2 * (p & 1)
            I(f"v_dot2c_f32_bf16 v{ss+oo}, v{x1p+p}, v{vONE}"); I(f"v_dot2c_f32_bf16 v{ss+oo+1}, v{x1p+p}, v{x1p+p}")
        I(f"v_pk_add_f32 {vr(ss,2)}, {vr(ss,2)}, {vr(ss+2,2)}")
        I(f"v_mov_b32 v{ss+2}, v{ss}"); I(f"v_mov_b32 v{ss+3}, v{ss+1}")
        I(f"v_permlane32_swap_b32 v{ss}, v{ss+2}"); I(f"v_permlane32_swap_b32 v{ss+1}, v{ss+3}")
        I(f"v_pk_add_f32 {vr(ss,2)}, {vr(ss,2)}, {vr(ss+2,2)}")
        I(f"buffer_store_dwordx2 {vr(ss,2)}, v{t0}, {RWS}, s{sT3} offen sc1", "x1", ta=8, lat=900)
        V.free(ss, 4); V.free(vRES, 8); V.free(acc3, 16); V.free(vX1, 16); V.free(vEW); V.free(vER2)
        self.auto = True
        a.label("L_s3_join")
        self.stamp("s3epi")
        vP3 = [V.alloc() for _ in range(4)]; vCS = V.alloc(16, 4); pk = V.alloc(); ps = V.alloc()
        hk = seq([f"v_and_b32 v{t0}, 3, v{vROW}", f"v_lshlrev_b32 v{t0}, 6, v{t0}", f"v_lshl_add_u32 v{t1}, v{vROW}, 8, v{vRC}",
                  f"v_add_u32 v{vP3[0]}, v{t0}, v{t1}"] + [f"v_xor_b32 v{vP3[k]}, {64*k}, v{vP3[0]}" for k in range(1, 4)] +
                 [f"v_add_u32 v{pk}, s{sQUART}, v{vPW}", f"v_add_u32 v{ps}, s{sQUART}, v{vPW2}",
                  f"s_lshl_b32 s{sT2}, s{sP}, 2", f"s_add_u32 s{sT2}, s{sT2}, s{sWAVE}", f"s_mul_i32 s{sG0}, s{sT2}, {UNIT}",
                  f"s_add_u32 s{sG0}, s{sG0}, {WS_X1}", f"s_add_u32 s{sG1}, s{sG0}, {UNIT}", f"s_mul_i32 s{sT0}, s{sR4}, 7168",
                  f"s_add_u32 s{sG0}, s{sG0}, s{sT0}", f"s_mul_i32 s{sT0}, s{sT2}, 3584", f"s_add_u32 s{sT0}, s{sT0}, {WS_ST}",
                  f"v_lshlrev_b32 v{t0}, 3, v{vT31}", f"v_lshrrev_b32 v{t1}, 5, v{vL}", f"v_mul_u32_u24 v{t2}, 1792, v{t1}",
                  f"v_add_u32 v{t0}, v{t0}, v{t2}", f"s_lshl_b32 s{sT1}, s{sJ}, 12", f"s_add_u32 s{sT1}, s{sT1}, {WS_CS}"], 1, 2)
        def h_cs(k0):
            def f():
                for k in range(k0, k0 + 2): I(f"buffer_load_dwordx4 {vr(vCS+4*k,4)}, v{vL16}, {RWS}, s{sT1} offen offset:{1024*k} sc1", "csl")
            return f
        def h_win(lst, ws): return lambda: [self.prewin(x, ws) for x in lst]
        hk.update({17: h_cs(0), 19: h_cs(2), 18: h_win(vP3[:2], (1, 2)), 20: h_win(vP3[2:], (1, 2)), 21: h_win([pk, ps], (1,)),
                   o.get("pub3", 25): lambda: self.publish(3, "x1")})
        self.loop1("wq", WQ, vPQ, acc, hooks=hk)
        self.bar()
        self.stamp("qloop")
        mv = dict(n=0)
        def mover(force=False):
            s = mv["n"]
            if s >= NREG or not self.issued(("w4", 2 * s + 1)): return False
            if not force and a.vm_t[a._last(a.vm, ("w4", 2 * s + 1))] + o.get("mvm", 150) > a.t: return False
            a.wait(vm=("w4", 2 * s + 1))
            sl = [self.where[("w4", 2 * s)], self.where[("w4", 2 * s + 1)]]
            for j, pat in enumerate((pk, ps)): self.afrag(aW4 + 8 * s + 4 * j, pat, sl[0] * 4096, sl[1] * 4096, ("mv", s), f=ar)
            self.release_slots(sl); mv["n"] += 1
            return True
        self.feature_map(acc, phi)
        self.drop_pat(vPQ)
        self.stamp("qsm")
        I(f"s_cmp_eq_u32 s{sN}, 7"); I("s_cbranch_scc1 L_reduce")
        self.auto = False
        h3p = self.poll_issue(vPG, WS_FLAG + 3 * 0x8000)
        vST = V.alloc(14, 2); vMU = V.alloc(4, 4)
        acc5 = [acc, accv, V.alloc(16, 4), V.alloc(16, 4)]
        def w3a(s): return W3[s // 7] + (s % 7) * 4096
        def rd5(s, k):
            if s % 7 == 0 and k == 0: self.need(f"w3{s//7}")
            self.afrag(R + 16 * (s % 2) + 4 * k, vP3[k], w3a(s), w3a(s) + 2048, ("w3", s, k))
            if s % 7 == 6 and k == 3: self.release(W3[s // 7])
        self.need(["w30", "w31", "w32"])
        for k in range(4): rd5(0, k)
        self.poll_check(h3p)
        a.t += o.get("gap2", 600)
        self.stamp("poll3")
        def ldx1(s):
            if s % 7 == 0 and s: adv(sG0, sG1, 7168, 4)()
            if s % 7 == 4: I(f"s_add_u32 s{sG2}, s{sG0}, 4096")
            I(f"buffer_load_dwordx4 {ar(aB+4*s,4)}, v{vL16}, {RWS}, s{sG0 if s % 7 < 4 else sG2} offen offset:{(s%7%4)*1024} sc1", ("x1l", s), lat=800)
        ex5 = [lambda k=k: I(f"buffer_load_dwordx2 {vr(vST+2*k,2)}, v{t0}, {RWS}, s{sT0} offen offset:{256*k} sc1", "stl", ta=8) for k in range(7)]
        K0 = vST + 4; K1 = vST + 6
        c0 = -2.0 * math.sqrt(2.0 / math.pi) * L2E; c1 = c0 * 0.044715
        side = [lambda: a.wait(vm="stl")]
        sl_ = []
        for k in range(1, 7): sl_ += [f"v_add_f32 v{vST}, v{vST}, v{vST+2*k}", f"v_add_f32 v{vST+1}, v{vST+1}, v{vST+2*k+1}"]
        sl_ += [f"v_mov_b32 v{vST+2}, v{vST}", f"v_mov_b32 v{vST+3}, v{vST+1}", f"v_mov_b32 v{vMU+2}, 0", f"v_mov_b32 v{vMU+3}, 0",
                f"v_permlane32_swap_b32 v{vST}, v{vST+2}", f"v_permlane32_swap_b32 v{vST+1}, v{vST+3}",
                f"v_add_f32 v{vST}, v{vST}, v{vST+2}", f"v_add_f32 v{vST+1}, v{vST+1}, v{vST+3}",
                f"v_mul_f32 v{vST}, {hx(f2u(-1/448))}, v{vST}", f"v_mul_f32 v{vST+1}, {hx(f2u(1/448))}, v{vST+1}",
                f"v_fma_f32 v{vST+1}, -v{vST}, v{vST}, v{vST+1}", f"v_cvt_pk_bf16_f32 v{vMU+1}, v{vST}, v{vST}",
                f"v_max_f32 v{vST+1}, 0, v{vST+1}", f"v_and_b32 v{vST+2}, 0xffff0000, v{vMU+1}",
                f"v_add_f32 v{vST+1}, {hx(f2u(1e-5))}, v{vST+1}", f"v_sub_f32 v{vST+2}, v{vST}, v{vST+2}",
                f"v_rsq_f32 v{vST+3}, v{vST+1}", f"v_cvt_pk_bf16_f32 v{vMU}, v{vST}, v{vST+2}",
                f"v_sqrt_f32 v{K1}, v{vST+1}", f"v_mul_f32 v{K0}, {hx(f2u(c0))}, v{vST+3}",
                f"v_mul_f32 v{K0+1}, v{vST+3}, v{vST+3}", f"v_mul_f32 v{K0+1}, v{K0+1}, v{vST+3}", f"v_mul_f32 v{K0+1}, {hx(f2u(c1))}, v{K0+1}",
                f"s_mul_i32 s{sT0}, s{sT2}, 14", f"s_add_u32 s{sT0}, s{sT0}, s{sJ}", f"s_lshl_b32 s{sT0}, s{sT0}, 13", f"s_add_u32 s{sT0}, s{sT0}, {WS_H3}",
                f"v_and_b32 v{t0}, 1, v{vL}", f"s_lshl_b32 s{sT1}, s{sHD}, 1", f"v_add_u32 v{t0}, s{sT1}, v{t0}", f"v_lshlrev_b32 v{vPA}, 10, v{t0}"]
        side += [(lambda x: lambda: I(x))(x) for x in sl_]
        DX = o.get("dx", 7); nx = DX
        for s in range(DX): ldx1(s)
        self.mover = mover
        for s in range(28):
            for k in range(4):
                a.wait(lg=("w3", s, k), vm=("x1l", s))
                self.mfma(acc5[k], vr(R + 16 * (s % 2) + 4 * k, 4), ar(aB + 4 * s, 4), s == 0)
                if s + 1 < 28: rd5(s + 1, k)
                if k == 3 and s % 7 == 0 and s: self.bar()
                elif nx < 28:
                    if k in (0, 2): ldx1(nx); nx += 1
                    elif k == 1: mover()
                elif ex5: ex5.pop(0)()
                elif s >= 18 and side and k in (1, 3):
                    for _ in range(3):
                        if side: side.pop(0)()
                else: self.tick()
        assert not side
        a.wait(vm="csl")
        for k in range(4): self.mfma(acc5[k], vr(vCS + 4 * k, 4), vr(vMU, 4), False); self.tick()
        self.bar()
        for p in vP3: self.drop_pat(p)
        V.free(vCS, 16); V.free(vMU, 4)
        self.stamp("s5loop")
        self.auto = True
        outp = [V.alloc(8, 4), V.alloc(8, 4)]
        for k in range(4):
            if k == 2: I(f"s_add_u32 s{sT0}, s{sT0}, 4096")
            if k == 3: self.auto = bool(o.get("auto53", 0))
            def st5(u, k=k): I(f"buffer_store_dwordx4 {vr(outp[k&1]+4*u,4)}, v{vL16}, {RWS}, s{sT0} offen offset:{(k&1)*2048+1024*u} sc1", "h3", **ST)
            self.gelu_tile(acc5[k], K0, K1, outp[k & 1], after=st5)
        for x in outp: V.free(x, 8)
        V.free(vST, 14)
        self.auto = False
        self.stamp("s5epi")
        a.label("L_s6")
        h4p = self.poll_issue(vPA, WS_FLAG + 4 * 0x8000 + 7 * 128)
        I(f"s_lshl_b32 s{sT0}, s{sHD}, 12"); I(f"s_add_u32 s{sT0}, s{sT0}, {WS_KVF}")
        self.tick(o.get("tk6", 4))
        self.publish(5, "h3")
        self.poll_check(h4p)
        for k in range(4): I(f"buffer_load_dwordx4 {vr(R+4*k,4)}, v{vL16}, {RWS}, s{sT0} offen offset:{1024*k} sc1", ("kvl", k), lat=800)
        self.auto = True
        vXA = V.alloc(); vXF = V.alloc(8, 4)
        I(f"v_mul_u32_u24 v{t0}, 896, v{vT31}"); I(f"v_lshrrev_b32 v{t1}, 5, v{vL}"); I(f"v_lshl_add_u32 v{t0}, v{t1}, 4, v{t0}")
        I(f"s_mul_i32 s{sT0}, s{sTT}, {32*896}"); I(f"s_lshl_b32 s{sT1}, s{sHD}, 6"); I(f"s_add_u32 s{sT0}, s{sT0}, s{sT1}")
        I(f"v_add_u32 v{vXA}, s{sT0}, v{t0}")
        for i in range(2): I(f"buffer_load_dwordx4 {vr(vXF+4*i,4)}, v{vXA}, {RX}, 0 offen offset:{32*i}", "xf", ta=64)
        I(f"s_lshl_b32 s{sT0}, s{sTT}, 4"); I(f"s_add_u32 s{sT0}, s{sT0}, s{sHD}"); I(f"s_lshl_b32 s{sT0}, s{sT0}, 11"); I(f"s_add_u32 s{sT0}, s{sT0}, {WS_O}")
        self.tick(6)
        for k in range(4):
            a.wait(vm=("kvl", k))
            self.mfma(acc, vr(R + 4 * k, 4), vr(phi + 4 * k, 4), k == 0); self.tick()
        dn = V.alloc(2)
        I(f"v_add_f32 v{dn+1}, {hx(f2u(1e-6))}, v{acc+12}")
        I(f"v_rcp_f32 v{dn+1}, v{dn+1}")
        I(f"v_mov_b32 v{dn}, v{dn+1}")
        I(f"v_permlane32_swap_b32 v{dn+1}, v{dn}")
        for p in range(8): I(f"v_pk_mul_f32 {vr(acc+2*p,2)}, {vr(acc+2*p,2)}, {vr(dn,2)} op_sel_hi:[1,0]")
        for p in range(8): I(f"v_cvt_pk_bf16_f32 v{phi+p}, v{acc+2*p}, v{acc+2*p+1}")
        I(f"v_and_b32 v{phi+6}, v{phi+6}, v{self.vMLO}"); I(f"v_and_b32 v{phi+7}, v{phi+7}, v{self.vMLO}")
        V.free(dn, 2)
        self.auto = False
        for u in range(2): I(f"buffer_store_dwordx4 {vr(phi+4*u,4)}, v{vL16}, {RWS}, s{sT0} offen offset:{1024*u} sc1", "o", **ST)
        I(f"s_cmp_eq_u32 s{sN}, 7"); I("s_cbranch_scc1 L_spare_end")
        self.stamp("s6")
        h5p = self.poll_issue(vPG, WS_FLAG + 5 * 0x8000)
        I(f"s_xor_b32 s{sT1}, s{sTT}, 1"); I(f"s_mov_b32 s{sT0}, s{sTT}")
        for x in (sT0, sT1):
            I(f"s_lshl_b32 s{x}, s{x}, 2"); I(f"s_add_u32 s{x}, s{x}, s{sWAVE}"); I(f"s_mul_i32 s{x}, s{x}, {UNIT}"); I(f"s_add_u32 s{x}, s{x}, {WS_H3}")
        I(f"s_lshl_b32 s{sG2}, s{sR7}, 12")
        I(f"v_and_b32 v{t0}, 7, v{vL}"); I(f"s_lshl_b32 s{sT2}, s{sM}, 3"); I(f"v_add_u32 v{t0}, s{sT2}, v{t0}"); I(f"v_lshlrev_b32 v{vPA}, 7, v{t0}")
        I(f"s_lshl_b32 s{sT2}, s{sTT}, 1"); I(f"s_add_u32 s{sT2}, s{sT2}, s{sW2}"); I(f"s_lshl_b32 s{sT2}, s{sT2}, 14"); I(f"s_add_u32 s{sT2}, s{sT2}, {WS_O}")
        while mover(): pass
        self.tick(o.get("tk7", 3))
        print("at S7 start: moved", mv["n"], "queue left", len(self.queue) - self.qi, file=sys.stderr)
        def breg(s, i): return ar(aB + 8 * (s % 14) + 4 * i, 4)
        def ldb(s, i):
            if s % 4 == 0 and i == 0:
                if s:
                    I(f"s_add_u32 s{sG2}, s{sG2}, 4096"); I(f"s_cmp_eq_u32 s{sG2}, {UNIT}"); I(f"s_cselect_b32 s{sG2}, 0, s{sG2}")
                I(f"s_add_u32 s{sG0}, s{sT0}, s{sG2}"); I(f"s_add_u32 s{sG1}, s{sT1}, s{sG2}")
            I(f"buffer_load_dwordx4 {breg(s,i)}, v{vL16}, {RWS}, s{(sG0,sG1)[i]} offen offset:{(s%4)*1024} sc1", ("h3l", s), lat=800)
        def rd7(s, j):
            if j == 0: self.need(("w4", 2 * s + 1), priv=True)
            self.afrag(R + 8 * (s % 3) + 4 * j, (pk, ps)[j], self.where[("w4", 2 * s)] * 4096, self.where[("w4", 2 * s + 1)] * 4096, ("w4r", s))
        def ldo(s):
            if s % 4 == 0 and s: I(f"s_add_u32 s{sT2}, s{sT2}, 4096")
            I(f"buffer_load_dwordx4 {ar(4*s,4)}, v{vL16}, {RWS}, s{sT2} offen offset:{(s%4)*1024} sc1", ("ol", s), lat=800)
        self.poll_check(h5p)
        a.t += o.get("gap3", 600)
        self.stamp("poll5")
        DB = o.get("db", 4); no = 0
        for s in range(DB): ldb(s, 0); ldb(s, 1)
        self.bar(); self.flag_store(6)
        nb = DB
        for s in range(28):
            if s < NREG:
                while mv["n"] <= s:
                    self.force(("w4", 2 * mv["n"] + 1)); mover(True)
                a.wait(lg=("mv", s), vm=("h3l", s))
            else: a.wait(lg=("w4r", s), vm=("h3l", s))
            for i in range(2):
                for j in range(2):
                    A_ = ar(aW4 + 8 * s + 4 * j, 4) if s < NREG else vr(R + 8 * (s % 3) + 4 * j, 4)
                    self.mfma(acc5[2 * i + j], A_, breg(s, i), s == 0)
                    if i == 0 and NREG <= s + 2 < 28: rd7(s + 2, j)
                    if nb < 28 and nb < s + 13 and (nb < s + DB + 1 or a.ta_free - a.t < self.backlog) and j == 0:
                        ldb(nb, 0); ldb(nb, 1); nb += 1
                    elif nb >= 28 and self.qi >= len(self.queue) and s >= o.get("ochk", 16) + 1 and no < 16 and a.ta_free - a.t < self.backlog:
                        ldo(no); no += 1
                    else: self.tick()
            if s == o.get("opoll", 9): h6p = self.poll_issue(vPA, WS_FLAG + 6 * 0x8000)
            if s == o.get("ochk", 16): self.poll_check(h6p)
        self.mover = None
        self.drop_pat(pk); self.drop_pat(ps)
        self.stamp("s7loop")
        self.force("wo1")
        while no < 16: ldo(no); no += 1
        sk = V.alloc(16, 4); ssd = V.alloc(16, 4); vX1 = V.alloc(16, 4)
        wr = V.alloc(); rd = [V.alloc() for _ in range(3)]
        I(f"v_add_u32 v{wr}, s{sQUART}, v{vL16}")
        for k, x in enumerate((2, 1, 3)): I(f"v_xor_b32 v{rd[k]}, {x << 10}, v{wr}")
        msl = list(range(0, 14)) + [21, 22]
        def mw(c, src):
            v, of = self.laddr(wr, msl[c] * 4096); I(f"ds_write_b128 {v}, {vr(src,4)} offset:{of}", "fw")
        def mr(c, dst, r_):
            v, of = self.laddr(r_, msl[c] * 4096); I(f"ds_read_b128 {vr(dst,4)}, {v} offset:{of}", ("fr", c))
        hk = {s: (lambda s=s: mw(s, acc5[1 + s // 4] + 4 * (s % 4))) for s in range(12)}
        def h_fb(): a.wait(lg="fw"); self.bar()
        hk[12] = h_fb
        for s in range(13, 16): hk[s] = (lambda s=s: [mr(4 * (s - 13) + k, acc5[1 + s - 13] + 4 * k, rd[s - 13]) for k in range(2)])
        un = []
        for p in range(8): un += [f"v_lshlrev_b32 v{vX1+2*p}, 16, v{x1p+p}", f"v_and_b32 v{vX1+2*p+1}, 0xffff0000, v{x1p+p}"]
        un += [f"v_add_f32 v{acc5[0]+k}, v{acc5[0]+k}, v{vX1+k}" for k in range(16)]
        hk2 = seq(un, 1, 1, 3)
        for s in range(13, 16): hk2[s] = (lambda s=s: [mr(4 * (s - 13) + k, acc5[1 + s - 13] + 4 * k, rd[s - 13]) for k in range(2, 4)])
        two_tile_loop("wo", 16, WO, lambda s: 28 * (s >> 1) + 16 * (s & 1), lambda s: ar(4 * s, 4), "ol", sk, ssd, last_alt=lambda s: s & 1, hooks=hk, hooks2=hk2)
        self.stamp("woloop")
        b = acc5[0]; e_ = acc5[1]
        a.wait(vm="xf")
        for i in range(2):
            I(f"v_permlane32_swap_b32 v{vXF+4*i}, v{vXF+4*i+2}"); I(f"v_permlane32_swap_b32 v{vXF+4*i+1}, v{vXF+4*i+3}")
        for p in range(4):
            I(f"v_lshlrev_b32 v{vX1+2*p}, 16, v{vXF+p}"); I(f"v_and_b32 v{vX1+2*p+1}, 0xffff0000, v{vXF+p}")
        for k in range(4): mw(12 + k, ssd + 4 * k)
        for c in range(12):
            if c % 2 == 0: a.wait(lg=("fr", c + 1))
            src = acc5[1 + c // 4] + 4 * (c % 4); dst = b + 4 * (c % 4)
            for e in range(2): I(f"v_pk_add_f32 {vr(dst+2*e,2)}, {vr(dst+2*e,2)}, {vr(src+2*e,2)}")
        for p in range(8): I(f"v_pk_mul_f32 {vr(e_+2*p,2)}, {vr(b+2*p,2)}, {sr(sL2E,2)} neg_lo:[1,0] neg_hi:[1,0]")
        a.wait(lg="fw"); self.bar()
        for k in range(4): mr(12 + k, ssd + 4 * k, rd[0])
        for k in range(16): I(f"v_exp_f32 v{e_+k}, v{e_+k}")
        for p in range(4, 8):
            I(f"v_lshlrev_b32 v{vX1+2*p}, 16, v{vXF+p}"); I(f"v_and_b32 v{vX1+2*p+1}, 0xffff0000, v{vXF+p}")
        for p in range(8): I(f"v_pk_add_f32 {vr(e_+2*p,2)}, {vr(e_+2*p,2)}, 1.0 op_sel_hi:[1,0]")
        for k in range(16): I(f"v_rcp_f32 v{e_+k}, v{e_+k}")
        a.wait(lg=("fr", 15))
        for p in range(8): I(f"v_pk_add_f32 {vr(sk+2*p,2)}, {vr(sk+2*p,2)}, {vr(ssd+2*p,2)}")
        for p in range(8): I(f"v_pk_mul_f32 {vr(b+2*p,2)}, {vr(b+2*p,2)}, {vr(e_+2*p,2)}")
        for i in range(2):
            for p in range(4 * i, 4 * i + 4): I(f"v_pk_fma_f32 {vr(b+2*p,2)}, {vr(b+2*p,2)}, {vr(sk+2*p,2)}, {vr(vX1+2*p,2)}")
            for p in range(4 * i, 4 * i + 4): I(f"v_cvt_pk_bf16_f32 v{vXF+p}, v{b+2*p}, v{b+2*p+1}")
            I(f"v_permlane32_swap_b32 v{vXF+4*i}, v{vXF+4*i+2}"); I(f"v_permlane32_swap_b32 v{vXF+4*i+1}, v{vXF+4*i+3}")
            I(f"buffer_store_dwordx4 {vr(vXF+4*i,4)}, v{vXA}, {ROUT}, 0 offen offset:{32*i}", "out")
        self.stamp("final")
        print("model end", a.t, "vgpr hi", V.hi, file=sys.stderr)
        a.label("L_fin")
        if self.prof:
            I("s_waitcnt vmcnt(0)")
            I(f"s_memrealtime {sr(sPF,2)}"); I(f"s_memtime {sr(sL2E,2)}"); I("s_waitcnt lgkmcnt(0)")
            I(f"v_writelane_b32 v{self.vPROF}, s{sPF}, 31"); I(f"v_writelane_b32 v{self.vPROF}, s{sL2E}, 29")
            I(f"s_lshl_b32 s{sT0}, s2, 2"); I(f"s_add_u32 s{sT0}, s{sT0}, s{sWAVE}"); I(f"s_lshl_b32 s{sT0}, s{sT0}, 7"); I(f"s_add_u32 s{sT0}, s{sT0}, {WS_PROF}")
            I(f"v_lshlrev_b32 v{t0}, 2, v{vL}")
            I("s_mov_b32 exec_hi, 0")
            I(f"buffer_store_dword v{self.vPROF}, v{t0}, {RWS}, s{sT0} offen")
        a.label("L_end")
        I("s_endpgm")

        a.label("L_abort")
        I(f"v_mov_b32 v{t0}, 0xdead"); I(f"buffer_store_dword v{t0}, v{vZ}, {RDBG}, 0 offen offset:16")
        I("s_endpgm")
        a.label("L_tok_retry")
        I(f"s_mov_b32 s{sCNT}, {POLL_MAX}")
        a.label("L_tok_loop")
        I(f"buffer_load_dwordx2 {vr(vTK2,2)}, v{vZ}, {RDBG}, 0 offen sc1")
        I(f"s_sub_u32 s{sCNT}, s{sCNT}, 1"); I("s_cbranch_scc1 L_abort")
        I("s_waitcnt vmcnt(0)")
        I(f"v_readfirstlane_b32 s{sT0}, v{vTK2+1}")
        I(f"s_cmp_eq_u32 s{sT0}, 0"); I("s_cbranch_scc1 L_tok_loop")
        I("s_branch L_tok_ok")
        self.emit_spins()
        a.label("L_s1_spare")
        self.restore(spare1[0])
        self.loop1("w1", W1, vPW, acc, swap=True, pre=xpre, bfrag=lambda s: vr(vONE, 4), hooks=hk1)
        self.release(*XN); a.wait(lg="res"); self.bar()
        while self.qi < spare1[1]: assert self.pump(1)
        assert self.qi == spare1[1]
        so = spare_out
        I(f"s_lshl_b32 s{sT0}, s{sM}, 1"); I(f"s_add_u32 s{sT0}, s{sT0}, s{sW2}"); I(f"s_lshl_b32 s{sT0}, s{sT0}, 10"); I(f"s_add_u32 s{sT0}, s{sT0}, {WS_CS}")
        I(f"v_cvt_pk_bf16_f32 v{so}, v{acc}, v{acc}"); I(f"v_and_b32 v{so+1}, 0xffff0000, v{so}"); I(f"v_sub_f32 v{so+1}, v{acc}, v{so+1}")
        I(f"v_mov_b32 v{so+2}, 0"); I(f"v_mov_b32 v{so+3}, 0")
        I(f"v_cvt_pk_bf16_f32 v{so+1}, v{so+1}, v{so+2}")
        I(f"v_and_b32 v{so}, v{so}, v{self.vMLO}"); I(f"v_and_b32 v{so+1}, v{so+1}, v{self.vMLO}")
        I(f"buffer_store_dwordx4 {vr(so,4)}, v{vL16}, {RWS}, s{sT0} offen sc1")
        I("s_waitcnt vmcnt(0)")
        I("s_branch L_s1_join")
        a.label("L_kv_nohs")
        I("s_waitcnt vmcnt(0)"); I("s_nop 7")
        I("s_branch L_kv_join")
        a.label("L_s3_skip")
        self.restore(snap3)
        self.force("wq1")
        I("s_waitcnt vmcnt(0) lgkmcnt(0)"); I("s_barrier"); self.flag_store(2)
        I("s_branch L_s3_join")
        a.label("L_reduce")
        I(f"v_lshlrev_b32 v{t0}, 3, v{vT31}"); I(f"s_lshr_b32 s{sT0}, s{sM}, 2"); I(f"v_add_u32 v{t0}, s{sT0}, v{t0}")
        I(f"v_lshlrev_b32 v{vPA}, 7, v{t0}")
        B0 = 192
        self.V = V = RA("v", 256, B0)
        assert max(phi + 16, vPA + 1, acc + 16, pk + 1, ps + 1, R + 32) <= B0
        self.poll(vPA, WS_FLAG + 2 * 0x8000)
        I(f"s_lshl_b32 s{sT0}, s{sM}, 12"); I(f"s_add_u32 s{sT0}, s{sT0}, s{sQUART}"); I(f"s_add_u32 s{sT0}, s{sT0}, {WS_KVP}")
        def rpl(k):
            I(f"buffer_load_dwordx4 {vr(B0+4+4*(k%15) if k else B0,4)}, v{vL16}, {RWS}, s{sT0} offen sc1", ("rp", k))
            I(f"s_add_u32 s{sT0}, s{sT0}, {16*8192}")
        for k in range(16): rpl(k)
        for k in range(1, 32):
            a.wait(vm=("rp", k))
            for e in range(2): I(f"v_pk_add_f32 {vr(B0+2*e,2)}, {vr(B0+2*e,2)}, {vr(B0+4+4*(k%15)+2*e,2)}")
            if k + 15 < 32: rpl(k + 15)
        I(f"v_cvt_pk_bf16_f32 v{B0+4}, v{B0}, v{B0+1}"); I(f"v_cvt_pk_bf16_f32 v{B0+5}, v{B0+2}, v{B0+3}")
        I(f"s_lshl_b32 s{sT0}, s{sM}, 1"); I(f"s_add_u32 s{sT0}, s{sT0}, s{sW2}"); I(f"s_lshl_b32 s{sT0}, s{sT0}, 10")
        I(f"s_lshl_b32 s{sT1}, s{sTH}, 3"); I(f"s_add_u32 s{sT0}, s{sT0}, s{sT1}"); I(f"s_add_u32 s{sT0}, s{sT0}, {WS_KVF}")
        I(f"buffer_store_dwordx2 {vr(B0+4,2)}, v{vL16}, {RWS}, s{sT0} offen sc1")
        I(f"v_and_b32 v{t0}, 1, v{vL}"); I(f"s_lshl_b32 s{sT1}, s{sHD}, 1"); I(f"v_add_u32 v{t0}, s{sT1}, v{t0}"); I(f"v_lshlrev_b32 v{vPA}, 10, v{t0}")
        I("s_waitcnt vmcnt(0)"); I("s_barrier"); self.flag_store(4)
        I("s_branch L_s6")
        self.emit_spins()
        a.label("L_spare_end")
        I("s_waitcnt vmcnt(0)"); I("s_barrier"); self.flag_store(6)
        I("s_branch L_fin")
        a.label("L_code_end")
        a.raw('.section .rodata,"a"'); a.raw(".p2align 6"); a.raw(f".amdhsa_kernel {NAME}_kernel")
        a.raw("  .amdhsa_next_free_vgpr 512"); a.raw("  .amdhsa_next_free_sgpr 102"); a.raw("  .amdhsa_accum_offset 256")
        a.raw("  .amdhsa_group_segment_fixed_size 0"); a.raw("  .amdhsa_kernarg_size 96"); a.raw("  .amdhsa_user_sgpr_count 2")
        a.raw("  .amdhsa_user_sgpr_kernarg_segment_ptr 1"); a.raw("  .amdhsa_system_sgpr_workgroup_id_x 1"); a.raw(".end_amdhsa_kernel")
        if self.prof: a.raw("; STAMPS " + " ".join(self.stamps))
        return a.text()

    def snapshot(self):
        a = self.a
        return dict(vm=list(a.vm), vm_done=a.vm_done, lg=list(a.lg), lg_done=a.lg_done, hist=list(a.hist), vm_t=list(a.vm_t), lg_t=list(a.lg_t),
                    tm=(a.t, a.mfma_free, a.ta_free), slots=copy.deepcopy(self.slots), qi=self.qi, synced=self.synced_vm, win=dict(self.win), used=list(self.V.used))
    def restore(self, s):
        a = self.a
        a.vm = list(s["vm"]); a.vm_done = s["vm_done"]; a.lg = list(s["lg"]); a.lg_done = s["lg_done"]; a.hist = list(s["hist"])
        a.vm_t = list(s["vm_t"]); a.lg_t = list(s["lg_t"]); a.t, a.mfma_free, a.ta_free = s["tm"]
        self.slots = copy.deepcopy(s["slots"]); self.qi = s["qi"]; self.synced_vm = s["synced"]; self.win = dict(s["win"]); self.V.used = list(s["used"])

if __name__ == "__main__":
    prof = "--prof" in sys.argv
    out = [x for x in sys.argv[1:] if not x.startswith("--")][0]
    opts = {}
    for x in sys.argv[1:]:
        if x.startswith("--o:"):
            k, v = x[4:].split("="); opts[k] = int(v) if v.isdigit() else v
    g = Gen(prof=prof, opts=opts)
    txt = g.build()
    if opts.get("align", 1):
        txt, nw, nn = align_pass(txt); print("align: widened", nw, "nops", nn, file=sys.stderr)
    hdr = open(f"cdna_kernels/{NAME}.s.ref").read().split("; Override")[0] if "--hdr" in sys.argv else ""
    open(out, "w").write(hdr + txt)
    print("instrs", g.a.count, "nops", g.a.nops, "agpr hi", g.A.hi, "bars", g.nbar, file=sys.stderr)
```

```python
import sys
NAME = "recurrent_scan__linear_kernel_hedgehog__mixer_s_mlp__prompt"
M = lambda i: f"v_mfma_f32_32x32x16_bf16 v[{128+16*(i%4)}:{143+16*(i%4)}], v[64:67], v[96:99], v[{128+16*(i%4)}:{143+16*(i%4)}]"
VA = lambda i: f"v_mul_f32 v{32+i%16}, v{68+i%16}, v{100+i%16}"
def dma(i): return [f"s_add_u32 m0, s34, {(i%32)*4096}", f"s_add_u32 s36, s32, {(i%64)*4096}", "buffer_load_dwordx4 v6, s[16:19], s36 offen lds"]
def dma2(i): return [f"buffer_load_dwordx4 v6, s[16:19], s32 offen lds"]
def ld(i): return [f"s_add_u32 s36, s32, {(i%64)*4096}", f"buffer_load_dwordx4 a[{4*(i%16)}:{4*(i%16)+3}], v6, s[16:19], s36 offen"]
def ldt(i): return [f"buffer_load_dwordx4 a[{4*(i%16)}:{4*(i%16)+3}], off, s[28:31], s32 offset:{(i%4)*1024}"]
def dmat(i): return [f"buffer_load_dwordx4 off, s[28:31], s32 offset:{(i%4)*1024} lds"]
def ld1(i): return [f"buffer_load_dwordx4 a[{4*(i%16)}:{4*(i%16)+3}], v6, s[16:19], s32 offen offset:{(i%4)*1024}"]
def ldd(i): return [f"buffer_load_dword a{(i%16)}, v7, s[16:19], s32 offen offset:{(i%4)*1024}"]
def gl(i): return [f"global_load_dwordx4 a[{4*(i%16)}:{4*(i%16)+3}], v6, s[6:7] offset:{(i%4)*1024}"]
def st(i): return [f"s_add_u32 s36, s33, {(i%64)*4096}", f"buffer_store_dwordx4 v[64:67], v6, s[24:27], s36 offen"]
def tr(i): return [f"ds_read_b64_tr_b16 a[{64+2*(i%16)}:{65+2*(i%16)}], v7 offset:{(i%32)*1024}"]
def body(kind, every, fn, n=64, per=1):
    L = []
    for i in range(n):
        if kind == "m": L.append(M(i))
        elif kind == "mt": L.append(M(i)); L += tr(2*i) + tr(2*i+1)
        else: L += [VA(8*i+k) for k in range(8)]
        if fn and i % every == every - 1:
            for k in range(per): L += fn(i*per+k)
    return L
tests = {}
for kind in ("v",):
    tests[f"{kind}_none"] = body(kind, 1, None)
    for nm, fn in (("dma2", dma2), ("ld1", ld1), ("ldt", ldt), ("dmat", dmat), ("ldd", ldd), ("gl", gl)):
        for ev in (8, 4, 2):
            tests[f"{kind}_{nm}_{ev}"] = body(kind, ev, fn)
def gen(block, onlyw0):
    L = []; a = L.append
    a(f"; @launch grid=(256,1,1) block=({block},1,1) lds=140000")
    a('.amdgcn_target "amdgcn-amd-amdhsa--gfx950"')
    a(".text"); a(f".globl {NAME}_kernel"); a(".p2align 8"); a(f".type {NAME}_kernel,@function")
    a(f"{NAME}_kernel:")
    a("s_cmp_ge_u32 s2, 256"); a("s_cbranch_scc1 L_end")
    a("s_load_dwordx2 s[8:9], s[0:1], 88"); a("s_load_dwordx2 s[6:7], s[0:1], 56")
    a("v_lshrrev_b32 v1, 6, v0"); a("v_and_b32 v2, 63, v0"); a("v_readfirstlane_b32 s23, v1")
    a("s_waitcnt lgkmcnt(0)")
    a("s_mov_b32 s24, s8"); a("s_mov_b32 s25, s9"); a("s_mov_b32 s26, 0x8000000"); a("s_mov_b32 s27, 0x20000")
    a("s_mov_b32 s16, s6"); a("s_mov_b32 s17, s7"); a("s_mov_b32 s18, 1605632"); a("s_mov_b32 s19, 0x20000")
    a("s_mov_b32 s28, s6"); a("s_or_b32 s29, s7, 0x100000"); a("s_mov_b32 s30, 100352"); a("s_mov_b32 s31, 0x00820000")
    a(f"s_mul_i32 s37, s2, {block//64}"); a("s_add_u32 s37, s37, s23"); a("s_lshl_b32 s37, s37, 8")
    a("s_lshl_b32 s34, s23, 10"); a("s_lshl_b32 s32, s23, 10"); a("s_mov_b32 m0, s34")
    a("s_lshl_b32 s33, s2, 18"); a("s_add_u32 s33, s33, s32"); a("s_add_u32 s33, s33, 0x1000000")
    a("v_lshlrev_b32 v6, 4, v2"); a("v_lshlrev_b32 v7, 3, v2")
    for r in range(32, 192): a(f"v_mov_b32 v{r}, 1.0")
    a("v_mov_b32 v9, 0")
    a("s_mov_b32 s60, 2")
    a("L_again:")
    for ti, (n, b) in enumerate(tests.items()):
        a("s_waitcnt vmcnt(0)"); a("s_barrier")
        a("s_memtime s[44:45]"); a("s_waitcnt lgkmcnt(0)")
        a(".p2align 3")
        for x in b: a(x)
        a("s_memtime s[46:47]"); a("s_waitcnt lgkmcnt(0)")
        a("s_sub_u32 s48, s46, s44"); a("v_mov_b32 v16, s48")
        a(f"buffer_store_dword v16, v9, s[24:27], s37 offen offset:{ti*4}")
    a("buffer_load_dwordx4 v[20:23], off, s[28:31], s32 offset:1024"); a("buffer_load_dwordx4 v[24:27], v6, s[16:19], s32 offen offset:1024"); a("s_waitcnt vmcnt(0)")
    a("v_xor_b32 v20, v20, v24"); a("v_xor_b32 v23, v23, v27"); a("v_or_b32 v20, v20, v23"); a("v_cmp_ne_u32 vcc, 0, v20"); a("s_nop 2"); a("s_bcnt1_i32_b64 s48, vcc"); a("v_mov_b32 v16, s48")
    a("buffer_store_dword v16, v9, s[24:27], s37 offen offset:200")
    a("s_sub_u32 s60, s60, 1"); a("s_cmp_lg_u32 s60, 0"); a("s_cbranch_scc0 L_end")
    a("s_getpc_b64 s[62:63]"); a("L_pc:"); a("s_sub_u32 s62, s62, L_pc-L_again"); a("s_subb_u32 s63, s63, 0"); a("s_setpc_b64 s[62:63]")
    a("L_end:")
    a("s_endpgm")
    a('.section .rodata,"a"'); a(".p2align 6"); a(f".amdhsa_kernel {NAME}_kernel")
    a(f"  .amdhsa_next_free_vgpr 320"); a("  .amdhsa_next_free_sgpr 102"); a(f"  .amdhsa_accum_offset 192")
    a("  .amdhsa_group_segment_fixed_size 0"); a("  .amdhsa_kernarg_size 96"); a("  .amdhsa_user_sgpr_count 2")
    a("  .amdhsa_user_sgpr_kernarg_segment_ptr 1"); a("  .amdhsa_system_sgpr_workgroup_id_x 1"); a(".end_amdhsa_kernel")
    return "\n".join(L) + "\n"
if __name__ == "__main__":
    for b in [64, 256]:
        open(f"mb20_{b}.s", "w").write(gen(b, 0))
```
